```python
import torch

def _softmax(x, axis=-1):
    return torch.softmax(x, dim=axis)
def _gelu(x):
    return torch.nn.functional.gelu(x, approximate="tanh")
def _silu(x):
    return torch.nn.functional.silu(x)
def _sigmoid(x):
    return torch.sigmoid(x)
def _layernorm(x, axis=-1, eps=1e-5):
    m = x.mean(dim=axis, keepdim=True)
    v = x.var(dim=axis, keepdim=True, unbiased=False)
    return (x - m) / torch.sqrt(v + eps)
def _scatter_add(tgt, idx, src, axis=0):
    return tgt.clone().index_add_(axis, idx, src)
def _segment_sum(src, seg, n):
    out = torch.zeros((n,) + src.shape[1:], dtype=src.dtype)
    return out.index_add_(0, seg, src)
def _pad(x, pw):
    flat = tuple(v for pair in reversed(pw) for v in pair)
    return torch.nn.functional.pad(x, flat)

kernel_name = 'sequential_preLN__ssm_conv_h3__mixer_token_mlp__prompt'

def setup_inputs():

    _w = (lambda a: (lambda t: t.to(torch.bfloat16) if t.is_floating_point() else t)(torch.as_tensor(a)))
    def _A_setup():
        B, S, D = 1, 2048, 448
        ks = 4
        return {
            "q": _w((lambda *s: torch.randn(*s, dtype=torch.bfloat16) * 0.05)(B, S, D)),
            "k": _w((lambda *s: torch.randn(*s, dtype=torch.bfloat16) * 0.2)(B, S, D)),
            "v": _w((lambda *s: torch.randn(*s, dtype=torch.bfloat16) * 0.2)(B, S, D)),
            "shift_k": _w((lambda *s: torch.randn(*s, dtype=torch.bfloat16) * 0.2)(D, ks) * 0.5),
            "ssm_k": _w((lambda *s: torch.randn(*s, dtype=torch.bfloat16) * 0.4)(D, S) * (1.0 / S ** 0.5)),
            "ssm_D": _w((lambda *s: torch.randn(*s, dtype=torch.bfloat16) * 0.2)(D)),
        }
    _A_in = _A_setup()

    def _B_setup():
        B, S, D, F = 1, 2048, 448, 1792
        return {
            "x": _w((lambda *s: torch.randn(*s, dtype=torch.bfloat16) * 0.05)(B, S, D)),
            "w1": _w((lambda *s: torch.randn(*s, dtype=torch.bfloat16) * 0.4)(S, F) * (S ** -0.5)),
            "b1": _w((lambda *s: torch.randn(*s, dtype=torch.bfloat16) * 3.2)(F) * 0.02),
            "w2": _w((lambda *s: torch.randn(*s, dtype=torch.bfloat16) * 0.2)(F, S) * (F ** -0.5)),
            "b2": _w((lambda *s: torch.randn(*s, dtype=torch.bfloat16) * 0.4)(S) * 0.02),
        }
    _B_in = _B_setup()

    return {
        "A_q": _A_in["q"],
        "A_k": _A_in["k"],
        "A_v": _A_in["v"],
        "A_shift_k": _A_in["shift_k"],
        "A_ssm_k": _A_in["ssm_k"],
        "A_ssm_D": _A_in["ssm_D"],
        "B_x": _B_in["x"],
        "B_w1": _B_in["w1"],
        "B_b1": _B_in["b1"],
        "B_w2": _B_in["w2"],
        "B_b2": _B_in["b2"],
    }

def reference(A_q, A_k, A_v, A_shift_k, A_ssm_k, A_ssm_D, B_x, B_w1, B_b1, B_w2, B_b2):
    def _A_ref(q, k, v, shift_k, ssm_k, ssm_D):
        B, S, D = q.shape
        ks = shift_k.shape[-1]
        k_pad = _pad(k, ((0, 0), (ks - 1, 0), (0, 0)))
        k_shift = torch.zeros_like(k)
        for t in range(ks):
            k_shift = k_shift + k_pad[:, t:t + S, :] * shift_k[:, ks - 1 - t][None, None, :]
        kv = k_shift * v
        L = 2 * S
        kv_pad = _pad(kv, ((0, 0), (0, S), (0, 0)))
        kf_pad = _pad(ssm_k, ((0, 0), (0, S)))
        kv_f = (lambda x, axes=(-2,-1): torch.fft.rfft2(x.float(), dim=axes))(kv_pad[:, None, :, :], axes=(1, 2))
        kf_f = (lambda x, axes=(-2,-1): torch.fft.rfft2(x.float(), dim=axes))(kf_pad[:, None, :], axes=(1, 2))
        kf_f = (lambda x, *d: x.permute(*d))(kf_f, 1, 2, 0)
        y_f = kv_f * kf_f[None, :, :, :]
        y = (lambda x, s, axes=(-2,-1): torch.fft.irfft2(x, s=s, dim=axes).to(torch.bfloat16))(y_f, (1, L), axes=(1, 2))[:, 0, :S, :]
        y = y + kv * ssm_D[None, None, :]
        return q * y

    def _B_ref(x, w1, b1, w2, b2):
        B, S, D = x.shape
        h = _layernorm(x, axis=-1)
        u = torch.einsum("bsd,sf->bdf", h, w1) + b1
        u = _gelu(u)
        y = torch.einsum("bdf,fs->bds", u, w2) + b2
        return (lambda x, *d: x.permute(*d))(y, 0, 2, 1)

    x = A_q
    h = x + _A_ref(_layernorm(x, axis=-1), A_k, A_v, A_shift_k, A_ssm_k, A_ssm_D)
    h2 = h + _B_ref(_layernorm(h, axis=-1), B_w1, B_b1, B_w2, B_b2)
    return h2
```

```python
import re

class Prog:
    def __init__(self):
        self.lines = []
    def __call__(self, s, *a):
        for ln in s.strip("\n").split("\n"):
            ln = ln.strip()
            if ln: self.lines.append(ln)
    def label(self, name): self.lines.append(name + ":")
    def raw(self, s): self.lines.append("\x00" + s)
    def c(self, s): self.lines.append("; " + s)
    def extend(self, other): self.lines += other.lines

def vr(b, n=1): return "v%d" % b if n == 1 else "v[%d:%d]" % (b, b + n - 1)
def ar(b, n=1): return "a%d" % b if n == 1 else "a[%d:%d]" % (b, b + n - 1)
def sr(b, n=1): return "s%d" % b if n == 1 else "s[%d:%d]" % (b, b + n - 1)

_REG = re.compile(r"^(-?)(abs\()?([vas])(?:(\d+)|\[(\d+):(\d+)\])\)?$")
def regs_of(op):
    op = op.strip()
    if op in ("vcc",): return {("s", "vcc")}
    if op in ("exec",): return {("s", "exec")}
    if op == "m0": return {("s", "m0")}
    m = _REG.match(op)
    if not m: return set()
    k = m.group(3)
    if m.group(4) is not None: lo = hi = int(m.group(4))
    else: lo, hi = int(m.group(5)), int(m.group(6))
    return {(k, i) for i in range(lo, hi + 1)}

TRANS = ("v_exp_f32", "v_log_f32", "v_rcp_f32", "v_rsq_f32", "v_sqrt_f32", "v_sin_f32", "v_cos_f32", "v_rcp_iflag_f32")

class Ins:
    def __init__(self, text):
        self.text = text
        t = text.split(";")[0].strip()
        parts = t.split(None, 1)
        self.mn = parts[0]
        rest = parts[1] if len(parts) > 1 else ""
        ops = [o.strip() for o in rest.split(",")] if rest else []
        self.mods = ""
        if ops:
            last = ops[-1].split(None, 1)
            if len(last) > 1 and not last[0].startswith("abs("):
                ops[-1] = last[0]; self.mods = last[1]
        self.ops = ops
        mn = self.mn
        self.valu = mn.startswith("v_") and not mn.startswith("v_mfma") and not mn.startswith("v_smfmac")
        self.mfma = mn.startswith("v_mfma")
        self.salu = mn.startswith("s_") and not mn.startswith(("s_waitcnt", "s_nop", "s_barrier", "s_branch", "s_cbranch", "s_endpgm", "s_load", "s_sleep", "s_setprio", "s_buffer_load", "s_memtime", "s_memrealtime"))
        self.vmem = mn.startswith(("buffer_", "global_", "flat_"))
        self.ds = mn.startswith("ds_")
        self.trans = mn.split("_e32")[0].split("_e64")[0] in TRANS
        self.dpp = ("row_" in self.mods) or ("quad_perm" in self.mods) or ("wave_" in self.mods) or mn.endswith("_dpp")
        self.permlane = mn.startswith("v_permlane")
        self.dot = mn.startswith("v_dot")
        self.lds_dma = self.vmem and (" lds" in " " + self.mods or "_lds_" in mn)
        defs, uses = set(), set()
        R = [regs_of(o) for o in ops]
        if self.mfma:
            defs = R[0]; uses = R[1] | R[2] | R[3]
            self.srcc = R[3]; self.srcab = R[1] | R[2]
            self.passes = 8 if "32x32x16" in mn else 4 if "16x16x32" in mn else 16
        elif self.valu:
            if mn.startswith("v_cmp"):
                defs = R[0]; uses = set().union(*R[1:])
            elif mn.startswith(("v_add_co", "v_sub_co", "v_addc_co", "v_subb_co", "v_subrev_co")):
                defs = R[0] | R[1]; uses = set().union(*R[2:])
            elif self.permlane and "swap" in mn:
                defs = R[0] | R[1]; uses = R[0] | R[1]
            elif mn.startswith("v_nop"):
                pass
            else:
                defs = R[0]; uses = set().union(*R[1:]) if len(R) > 1 else set()
                if mn.startswith(("v_fmac", "v_pk_fmac", "v_dot2c", "v_mac", "v_writelane")) or self.dpp:
                    uses |= R[0]
                if mn.startswith("v_cndmask") and len(ops) == 3: uses |= {("s", "vcc")}
        elif self.vmem:
            if "_store" in mn or (self.lds_dma) or mn.startswith(("buffer_wbl2", "buffer_inv")):
                uses = set().union(*R) if R else set()
            elif "atomic" in mn:
                uses = set().union(*R)
                if "sc0" in self.mods: defs = R[0]
            else:
                defs = R[0]; uses = set().union(*R[1:])
            if self.lds_dma: uses |= {("s", "m0")}
        elif self.ds:
            if mn.startswith(("ds_write", "ds_add")):
                uses = set().union(*R)
            else:
                defs = R[0]; uses = set().union(*R[1:])
        elif mn.startswith("s_"):
            if mn.startswith(("s_cmp", "s_bitcmp", "s_waitcnt", "s_nop", "s_barrier", "s_branch", "s_cbranch", "s_endpgm", "s_sleep", "s_setprio")):
                uses = set().union(*R) if R else set()
            else:
                defs = R[0] if R else set(); uses = set().union(*R[1:]) if len(R) > 1 else set()
                if "saveexec" in mn: defs |= {("s", "exec")}
        self.defs, self.uses = defs, uses
        self.wide_store = self.vmem and "_store" in mn and (mn.endswith("x4") or mn.endswith("x3"))
        self.store_data = R[0] if (self.wide_store and mn.startswith("buffer")) else (R[1] if self.wide_store else set())
        self.readlane = mn.startswith(("v_readlane", "v_readfirstlane"))
    def states(self):
        if self.mn == "s_nop": return int(self.ops[0], 0) + 1
        return 1

def vonly(s): return {x for x in s if x[0] in "va"}
def sonly(s): return {x for x in s if x[0] == "s"}

def need(p, c):
    n = 0
    pv, ps = vonly(p.defs), sonly(p.defs)
    if p.valu and not p.mfma:
        if c.mfma and pv & c.uses: n = max(n, 2)
        if c.valu or c.mfma:
            if ps & c.uses:
                n = max(n, 4 if (c.mn.startswith(("v_readlane", "v_writelane")) and ps & regs_of(c.ops[-1])) else 2)
        if c.vmem and ps & c.uses: n = max(n, 5)
        if c.readlane and pv & c.uses: n = max(n, 1)
        if c.valu and c.dpp and pv & c.uses: n = max(n, 2)
        if c.permlane and pv & c.uses: n = max(n, 2)
        if p.trans and c.valu and not c.trans and pv & c.uses: n = max(n, 1)
        if p.trans and (c.vmem or c.ds) and pv & c.uses: n = max(n, 1)
        if p.dot and pv & (c.uses | c.defs):
            same_c = c.dot and c.mn == p.mn and not (pv & set().union(*[regs_of(o) for o in c.ops[1:]]))
            if not same_c: n = max(n, 3)
    if p.mfma:
        d = p.defs
        if c.mfma:
            if d & c.srcab: n = max(n, {4: 8, 8: 12, 16: 20}[p.passes])
            if d & c.srcc and not (d == c.srcc and p.passes == c.passes): n = max(n, {4: 6, 8: 10, 16: 18}[p.passes])
        elif c.valu or c.vmem or c.ds:
            if d & (c.uses | c.defs): n = max(n, {4: 8, 8: 12, 16: 20}[p.passes])
            if c.valu and p.srcc & c.defs: n = max(n, {4: 3, 8: 7, 16: 15}[p.passes])
    if p.salu and ("s", "m0") in p.defs and c.lds_dma: n = max(n, 1)
    if p.wide_store and p.store_data & c.defs:
        n = max(n, 2 if c.valu else 1)
    return n

def pad_hazards(lines, window=24):
    out, hist = [], []
    nins = 0
    for ln in lines:
        if ln.startswith(("\x00", ";")) or ln.endswith(":") or ln.startswith("."):
            out.append(ln); continue
        c = Ins(ln)
        req = 0; dist = 0
        for p in reversed(hist):
            r = need(p, c)
            if r > dist: req = max(req, r - dist)
            dist += p.states()
            if dist > window: break
        while req > 0:
            k = min(req, 16)
            nop = "s_nop %d" % (k - 1)
            out.append(nop); hist.append(Ins(nop)); req -= k; nins += 1
        out.append(ln); hist.append(c)
        if len(hist) > 64: hist = hist[-64:]
    return out

def render(lines):
    o = []
    for ln in lines:
        if ln.startswith("\x00"): o.append(ln[1:])
        elif ln.endswith(":") or ln.startswith((";", ".")): o.append(ln)
        else: o.append("    " + ln)
    return "\n".join(o) + "\n"
```

```python
import sys
from asmlib import *

NAME = "sequential_preLN__ssm_conv_h3__mixer_token_mlp__prompt"
S, D, F = 2048, 448, 1792
WS_XR, WS_YT, WS_QST, WS_H, WS_HN, WS_U = 0x0, 0x200000, 0x400000, 0x500000, 0x700000, 0x900000
SZ_SD = S * D * 2
SZ_U = F * D * 2
BIG = 0x80000000

def srd(p, dst, ptr, size, off=0):
    if off:
        p(f"s_add_u32 s{dst}, s{ptr}, {hex(off)}")
        p(f"s_addc_u32 s{dst+1}, s{ptr+1}, 0")
    else:
        p(f"s_mov_b32 s{dst}, s{ptr}")
        p(f"s_mov_b32 s{dst+1}, s{ptr+1}")
    p(f"s_mov_b32 s{dst+2}, {hex(size)}")
    p(f"s_mov_b32 s{dst+3}, 0x20000")

def unpack(p, lo, hi, src):
    p(f"v_lshlrev_b32 v{lo}, 16, v{src}")
    p(f"v_and_b32 v{hi}, 0xffff0000, v{src}")

def k1(p):
    p("s_cmp_ge_u32 s2, 256")
    p("s_cbranch_scc1 K1_END")
    p("s_load_dwordx8 s[4:11], s[0:1], 0")
    p("s_load_dwordx2 s[12:13], s[0:1], 104")
    p("s_cmp_ge_u32 s2, 224")
    p("s_cbranch_scc1 K1_STATS")
    p("s_lshr_b32 s14, s2, 5")
    p("s_and_b32 s15, s2, 31")
    p("v_and_b32 v3, 7, v0")
    p("v_lshrrev_b32 v4, 3, v0")
    p("s_mul_i32 s40, s15, 57344")
    p("s_lshl_b32 s41, s14, 7")
    p("s_add_u32 s40, s40, s41")
    p("v_mul_u32_u24 v1, 7168, v3")
    p("v_lshl_add_u32 v1, v4, 2, v1")
    p("v_add_u32 v1, s40, v1")
    p("v_subrev_u32 v2, 2688, v1")
    p(f"v_mov_b32 v5, {hex(BIG)}")
    p("v_cmp_gt_u32 vcc, 2688, v1")
    p("v_cndmask_b32 v2, v2, v5, vcc")
    p("s_lshl_b32 s42, s14, 9")
    p("v_lshl_add_u32 v6, v4, 4, s42")
    p("s_lshl_b32 s43, s14, 18")
    p("s_lshl_b32 s44, s15, 7")
    p("s_add_u32 s43, s43, s44")
    p("v_lshlrev_b32 v7, 13, v4")
    p("v_lshl_add_u32 v7, v3, 4, v7")
    p("v_add_u32 v7, s43, v7")
    p("s_movk_i32 s41, 4480")
    p("s_movk_i32 s45, 4096")
    p("s_waitcnt lgkmcnt(0)")
    srd(p, 16, 6, SZ_SD); srd(p, 20, 8, SZ_SD); srd(p, 24, 10, D * 8); srd(p, 28, 12, SZ_SD, WS_XR)
    p("buffer_load_dwordx4 v[32:35], v6, s[24:27], 0 offen")
    for j in range(3): p(f"buffer_load_dword v{10+j}, v2, s[16:19], 0 offen offset:{896*j}")
    for r in range(8):
        so, off = ("0", 896 * r) if r < 5 else ("s41", 896 * (r - 5))
        p(f"buffer_load_dword v{13+r}, v1, s[16:19], {so} offen offset:{off}")
    for r in range(8):
        so, off = ("0", 896 * r) if r < 5 else ("s41", 896 * (r - 5))
        p(f"buffer_load_dword v{21+r}, v1, s[20:23], {so} offen offset:{off}")
    p("s_waitcnt vmcnt(19)")
    p("v_lshlrev_b32 v36, 16, v32"); p("v_lshlrev_b32 v37, 16, v34")
    p("v_and_b32 v38, 0xffff0000, v32"); p("v_and_b32 v39, 0xffff0000, v34")
    p("v_lshlrev_b32 v40, 16, v33"); p("v_lshlrev_b32 v41, 16, v35")
    p("v_and_b32 v42, 0xffff0000, v33"); p("v_and_b32 v43, 0xffff0000, v35")
    p("s_waitcnt vmcnt(8)")
    for r in range(11): unpack(p, 44 + 2 * r, 45 + 2 * r, 10 + r)
    for r in range(8):
        x = 82 + 2 * r
        K = lambda i: vr(44 + 2 * i, 2)
        p(f"v_pk_mul_f32 {vr(x,2)}, {K(r+3)}, v[36:37]")
        p(f"v_pk_fma_f32 {vr(x,2)}, {K(r+2)}, v[38:39], {vr(x,2)}")
        p(f"v_pk_fma_f32 {vr(x,2)}, {K(r+1)}, v[40:41], {vr(x,2)}")
        p(f"v_pk_fma_f32 {vr(x,2)}, {K(r)}, v[42:43], {vr(x,2)}")
    p("s_waitcnt vmcnt(0)")
    for r in range(8): unpack(p, 66 + 2 * r, 67 + 2 * r, 21 + r)
    for r in range(8): p(f"v_pk_mul_f32 {vr(82+2*r,2)}, {vr(82+2*r,2)}, {vr(66+2*r,2)}")
    for ch in range(2):
        for e in range(4):
            p(f"v_cvt_pk_bf16_f32 v{100+4*ch+e}, v{82+2*(7-2*e)+ch}, v{82+2*(6-2*e)+ch}")
    p("buffer_store_dwordx4 v[100:103], v7, s[28:31], 0 offen")
    p("buffer_store_dwordx4 v[104:107], v7, s[28:31], s45 offen")
    p("s_endpgm")
    p.label("K1_STATS")
    p("s_sub_u32 s14, s2, 224")
    p("v_lshrrev_b32 v3, 6, v0")
    p("v_and_b32 v4, 63, v0")
    p("s_mul_i32 s40, s14, 57344")
    p("v_mul_u32_u24 v1, 14336, v3")
    p("v_lshl_add_u32 v1, v4, 4, v1")
    p("v_add_u32 v1, s40, v1")
    p(f"v_mov_b32 v5, {hex(BIG)}")
    p("v_cmp_gt_u32 vcc, 56, v4")
    p("v_cndmask_b32 v1, v5, v1, vcc")
    p("s_movk_i32 s41, 4480"); p("s_movk_i32 s42, 8960"); p("s_movk_i32 s43, 13440")
    p("s_mov_b32 s44, 0x3f803f80")
    p("s_waitcnt lgkmcnt(0)")
    srd(p, 32, 4, SZ_SD); srd(p, 36, 12, S * 8, WS_QST)
    for r in range(16):
        so = ["0", "s41", "s42", "s43"][r // 5]
        p(f"buffer_load_dwordx4 {vr(10+4*r,4)}, v1, s[32:35], {so} offen offset:{896*(r%5)}")
    for r in range(16):
        p(f"s_waitcnt vmcnt({15-r})")
        b = 10 + 4 * r; Sx, Qx = 80 + 2 * r, 81 + 2 * r
        p(f"v_dot2_f32_bf16 v{Sx}, v{b}, s44, 0")
        p(f"v_dot2_f32_bf16 v{Qx}, v{b}, v{b}, 0")
        for j in range(1, 4):
            p(f"v_dot2_f32_bf16 v{Sx}, v{b+j}, s44, v{Sx}")
            p(f"v_dot2_f32_bf16 v{Qx}, v{b+j}, v{b+j}, v{Qx}")
    p("s_nop 3")
    for r in range(16): p(f"v_permlane32_swap_b32 v{80+2*r}, v{81+2*r}")
    for r in range(16): p(f"v_add_f32 v{80+2*r}, v{80+2*r}, v{81+2*r}")
    for k in range(8): p(f"v_permlane16_swap_b32 v{80+4*k}, v{82+4*k}")
    for k in range(8): p(f"v_add_f32 v{80+4*k}, v{80+4*k}, v{82+4*k}")
    for sh in (8, 4, 2, 1):
        for k in range(8): p(f"v_add_f32_dpp v{80+4*k}, v{80+4*k}, v{80+4*k} row_ror:{sh} row_mask:0xf bank_mask:0xf")
    p("v_and_b32 v6, 7, v4")
    p("v_mov_b32 v7, v80")
    for k in range(1, 8):
        p(f"v_cmp_eq_u32 vcc, {k}, v6")
        p(f"v_cndmask_b32 v7, v7, v{80+4*k}, vcc")
    p("v_mov_b32 v8, v7")
    p("v_permlane32_swap_b32 v7, v8")
    p("s_mov_b32 s46, 0x3b124925")
    p("s_mov_b32 s47, 0x3727c5ac")
    p("v_mul_f32 v10, s46, v7")
    p("v_mul_f32 v9, s46, v8")
    p("v_fma_f32 v9, -v10, v10, v9")
    p("v_max_f32 v9, 0, v9")
    p("v_add_f32 v9, s47, v9")
    p("v_rsq_f32 v11, v9")
    p("s_lshl_b32 s40, s14, 9")
    p("v_lshlrev_b32 v12, 7, v3")
    p("v_lshl_add_u32 v12, v6, 4, v12")
    p("v_bfe_u32 v13, v4, 4, 1")
    p("v_lshl_add_u32 v12, v13, 3, v12")
    p("v_add_u32 v12, s40, v12")
    p("s_mov_b32 exec_lo, 0x00ff00ff")
    p("s_mov_b32 exec_hi, 0")
    p("buffer_store_dwordx2 v[10:11], v12, s[36:39], 0 offen")
    p.label("K1_END")
    p("s_endpgm")

LX, PL = 0, 1568
LK, CP = 12544, 4160
LE = 45824
K2_LDS = LE + 16384
def k2(p):
    p("s_cmp_ge_u32 s2, 224")
    p("s_cbranch_scc1 K2_END")
    p("s_load_dwordx4 s[4:7], s[0:1], 32")
    p("s_load_dwordx2 s[12:13], s[0:1], 104")
    p("v_lshrrev_b32 v2, 7, v0")
    p("v_and_b32 v3, 127, v0")
    p("s_lshl_b32 s14, s2, 13")
    p("v_lshlrev_b32 v4, 12, v2")
    p("v_add_u32 v4, s14, v4")
    p("v_lshl_add_u32 v5, v3, 4, v4")
    p(f"v_mov_b32 v9, {hex(BIG)}")
    p("v_subrev_u32 v6, 64, v5")
    p("v_cmp_gt_u32 vcc, 4, v3")
    p("v_cndmask_b32 v6, v6, v9, vcc")
    p("v_subrev_u32 v7, 48, v5")
    p("v_cmp_gt_u32 vcc, 3, v3")
    p("v_cndmask_b32 v7, v7, v9, vcc")
    p("v_add_u32 v8, 1984, v5")
    p("v_add_u32 v10, 4032, v5")
    p("v_cmp_gt_u32 vcc, 4, v3")
    p("v_cndmask_b32 v10, v9, v10, vcc")
    p("v_add_u32 v11, 4048, v5")
    p("v_cmp_gt_u32 vcc, 3, v3")
    p("v_cndmask_b32 v11, v9, v11, vcc")
    p("s_waitcnt lgkmcnt(0)")
    srd(p, 16, 4, SZ_SD); srd(p, 20, 12, SZ_SD, WS_XR); srd(p, 24, 12, SZ_SD, WS_YT)
    p("s_lshl_b32 s15, s2, 2")
    p("s_load_dword s28, s[6:7], s15")
    W = [16, 24, 32]
    p("buffer_load_dwordx4 v[16:19], v6, s[16:19], 0 offen")
    p("buffer_load_dwordx2 v[20:21], v7, s[16:19], 0 offen")
    p("buffer_load_dwordx4 v[24:27], v8, s[16:19], 0 offen")
    p("buffer_load_dwordx2 v[28:29], v8, s[16:19], 0 offen offset:16")
    p("buffer_load_dwordx4 v[32:35], v10, s[16:19], 0 offen")
    p("buffer_load_dwordx2 v[36:37], v11, s[16:19], 0 offen")
    p("buffer_load_dwordx4 v[40:43], v5, s[20:23], 0 offen")
    p("buffer_load_dwordx4 v[44:47], v5, s[20:23], 0 offen offset:2048")
    p("v_lshrrev_b32 v12, 5, v3")
    p("v_and_b32 v13, 31, v3")
    p("v_mul_u32_u24 v14, 6272, v2")
    p(f"v_mul_u32_u24 v12, {PL}, v12")
    p("v_add_u32 v12, v12, v14")
    p("v_lshl_add_u32 v12, v13, 4, v12")
    for j in range(4): p(f"v_mov_b32 v{48+j}, 0")
    p("ds_write_b128 v12, v[48:51]")
    p("v_and_b32 v12, 3, v3")
    p(f"v_mul_u32_u24 v12, {PL}, v12")
    p("v_add_u32 v12, v12, v14")
    p("v_lshrrev_b32 v13, 2, v3")
    p("v_lshl_add_u32 v12, v13, 4, v12")
    p(f"v_mul_u32_u24 v15, {4*CP}, v2")
    p("v_lshl_add_u32 v15, v3, 4, v15")
    p(f"v_add_u32 v15, {LK}, v15")
    for r in range(3):
        w = W[r]
        p(f"s_waitcnt vmcnt({6-2*r})")
        if r == 2:
            p("v_cmp_gt_u32 vcc, 4, v3")
            p("s_and_saveexec_b64 s[30:31], vcc")
            p("s_cbranch_execz K2_SKIP3")
        for i in range(4): p(f"v_alignbit_b32 v{52+i}, v{w+i+1}, v{w+i}, 16")
        for i in range(4): p(f"v_mov_b32 v{56+i}, v{w+1+i}")
        for i in range(4): p(f"v_alignbit_b32 v{60+i}, v{w+i+2}, v{w+i+1}, 16")
        p(f"ds_write_b128 v15, v[52:55] offset:{0*CP + 2048*r}")
        p(f"ds_write_b128 v15, v[56:59] offset:{1*CP + 2048*r}")
        p(f"ds_write_b128 v15, v[60:63] offset:{2*CP + 2048*r}")
        p(f"ds_write_b128 v15, {vr(w+2,4)} offset:{3*CP + 2048*r}")
        if r == 2:
            p.label("K2_SKIP3")
            p("s_mov_b64 exec, s[30:31]")
        p("s_nop 1")
    p("s_waitcnt vmcnt(0)")
    p("ds_write_b128 v12, v[40:43] offset:512")
    p("ds_write_b128 v12, v[44:47] offset:1024")
    p("v_lshrrev_b32 v2, 6, v0")
    p("s_nop 0")
    p("v_readfirstlane_b32 s32, v2")
    p("s_lshr_b32 s33, s32, 1")
    p("s_and_b32 s34, s32, 1")
    p("v_and_b32 v3, 31, v0")
    p("v_bfe_u32 v4, v0, 5, 1")
    p("v_and_b32 v5, 3, v3")
    p(f"v_mul_u32_u24 v5, {CP}, v5")
    p("v_lshrrev_b32 v6, 2, v3")
    p("v_lshl_add_u32 v5, v6, 3, v5")
    p("v_lshl_add_u32 v5, v4, 4, v5")
    p(f"s_mul_i32 s35, s33, {4*CP}")
    p("s_lshl_b32 s36, s34, 5")
    p("s_add_u32 s35, s35, s36")
    p(f"s_add_u32 s35, s35, {LK}")
    p("v_add_u32 v5, s35, v5")
    p("s_lshl_b32 s36, s34, 1")
    p("s_sub_u32 s36, 3, s36")
    p("v_sub_u32 v6, s36, v4")
    p(f"v_mul_u32_u24 v6, {PL}, v6")
    p("v_lshl_add_u32 v6, v3, 4, v6")
    p("s_mul_i32 s37, s33, 6272")
    p("v_add_u32 v6, s37, v6")
    A0, A1 = 64, 80
    for j in range(32): p(f"v_mov_b32 v{64+j}, 0")
    p("s_waitcnt lgkmcnt(0)")
    p("s_barrier")
    NS = 4
    RA = lambda s: 100 + 12 * s
    RB1 = lambda s: 104 + 12 * s
    RB0 = lambda s: 108 + 12 * s
    def nreads(d): return 4 if d < 32 else 3
    def issue(d):
        s = d % NS
        p(f"ds_read_b64 {vr(RA(s),2)}, v5 offset:{64*d}")
        p(f"ds_read_b64 {vr(RA(s)+2,2)}, v5 offset:{64*d+8}")
        p(f"ds_read_b128 {vr(RB1(s),4)}, v6 offset:{(64-d)*16}")
        if d < 32: p(f"ds_read_b128 {vr(RB0(s),4)}, v6 offset:{(32-d)*16}")
    PD = 3
    for d in range(PD): issue(d)
    for d in range(64):
        later = sum(nreads(e) for e in range(d + 1, min(d + PD - 1, 63) + 1))
        p(f"s_waitcnt lgkmcnt({later})")
        if d + PD < 64: issue(d + PD)
        s = d % NS
        p(f"v_mfma_f32_32x32x16_bf16 {vr(A1,16)}, {vr(RA(s),4)}, {vr(RB1(s),4)}, {vr(A1,16)}")
        if d < 32: p(f"v_mfma_f32_32x32x16_bf16 {vr(A0,16)}, {vr(RA(s),4)}, {vr(RB0(s),4)}, {vr(A0,16)}")
    p("s_nop 7")
    p("v_and_b32 v7, 63, v0")
    p("v_lshlrev_b32 v7, 4, v7")
    p("s_lshl_b32 s38, s32, 12")
    p(f"s_add_u32 s38, s38, {LE}")
    p("v_add_u32 v8, s38, v7")
    p("s_xor_b32 s39, s32, 1")
    p("s_lshl_b32 s39, s39, 12")
    p(f"s_add_u32 s39, s39, {LE}")
    p("v_add_u32 v9, s39, v7")
    p("s_cmp_eq_u32 s34, 0")
    p("s_cbranch_scc1 K2_H0")
    for j in range(4): p(f"ds_write_b128 v8, {vr(A0+4*j,4)} offset:{1024*j}")
    p("s_nop 1")
    for j in range(16): p(f"v_mov_b32 v{A0+j}, v{A1+j}")
    p("s_branch K2_JOIN")
    p.label("K2_H0")
    for j in range(4): p(f"ds_write_b128 v8, {vr(A1+4*j,4)} offset:{1024*j}")
    p.label("K2_JOIN")
    p("s_lshl_b32 s36, s34, 9")
    p("s_add_u32 s36, s36, s37")
    p("s_add_u32 s36, s36, 520")
    p("v_lshlrev_b32 v10, 4, v3")
    p("v_lshlrev_b32 v11, 3, v4")
    p("v_sub_u32 v10, v10, v11")
    p("v_add_u32 v10, s36, v10")
    for r4 in range(4): p(f"ds_read_b64 {vr(100+2*r4,2)}, v10 offset:{PL*r4}")
    p("s_lshl_b32 s40, s28, 16")
    p("s_and_b32 s41, s28, 0xffff0000")
    p("s_cmp_eq_u32 s33, 0")
    p("s_cselect_b32 s40, s40, s41")
    p("s_waitcnt lgkmcnt(0)")
    p("s_barrier")
    for j in range(4): p(f"ds_read_b128 {vr(A1+4*j,4)}, v9 offset:{1024*j}")
    for r4 in range(4):
        d0, d1 = 100 + 2 * r4, 101 + 2 * r4
        b = 110 + 4 * r4
        p(f"v_lshlrev_b32 v{b+3}, 16, v{d0}")
        p(f"v_and_b32 v{b+2}, 0xffff0000, v{d0}")
        p(f"v_lshlrev_b32 v{b+1}, 16, v{d1}")
        p(f"v_and_b32 v{b+0}, 0xffff0000, v{d1}")
    p("s_waitcnt lgkmcnt(0)")
    for j in range(16): p(f"v_add_f32 v{A0+j}, v{A0+j}, v{A1+j}")
    for j in range(16): p(f"v_fma_f32 v{A0+j}, v{110+j}, s40, v{A0+j}")
    for r4 in range(4):
        p(f"v_cvt_pk_bf16_f32 v{100+2*r4}, v{A0+4*r4}, v{A0+4*r4+1}")
        p(f"v_cvt_pk_bf16_f32 v{101+2*r4}, v{A0+4*r4+2}, v{A0+4*r4+3}")
    for u in range(2):
        p(f"v_permlane32_swap_b32 v{100+4*u}, v{102+4*u}")
        p(f"v_permlane32_swap_b32 v{101+4*u}, v{103+4*u}")
    p("s_lshl_b32 s42, s2, 1")
    p("s_add_u32 s42, s42, s33")
    p("s_lshl_b32 s42, s42, 12")
    p("s_lshl_b32 s43, s34, 11")
    p("s_add_u32 s42, s42, s43")
    p("v_lshlrev_b32 v12, 6, v3")
    p("v_lshl_add_u32 v12, v4, 4, v12")
    p("v_add_u32 v12, s42, v12")
    p("buffer_store_dwordx4 v[100:103], v12, s[24:27], 0 offen")
    p("buffer_store_dwordx4 v[104:107], v12, s[24:27], 0 offen offset:32")
    p.label("K2_END")
    p("s_endpgm")

K3_LDS = 256
def k3(p):
    p("s_cmp_ge_u32 s2, 256")
    p("s_cbranch_scc1 K3_END")
    p("s_load_dwordx2 s[4:5], s[0:1], 0")
    p("s_load_dwordx2 s[12:13], s[0:1], 104")
    p("s_and_b32 s14, s2, 7")
    p("s_lshl_b32 s14, s14, 5")
    p("s_lshr_b32 s15, s2, 3")
    p("s_add_u32 s14, s14, s15")
    p(f"v_mov_b32 v9, {hex(BIG)}")
    p("v_cmp_gt_u32 vcc, 224, v0")
    p("s_lshl_b32 s36, s14, 4")
    p("v_lshlrev_b32 v1, 13, v0")
    p("v_add_u32 v1, s36, v1")
    p("v_cndmask_b32 v1, v9, v1, vcc")
    p("s_mul_i32 s37, s14, 7168")
    p("v_lshlrev_b32 v2, 2, v0")
    p("v_add_u32 v2, s37, v2")
    p("v_cndmask_b32 v2, v9, v2, vcc")
    p("v_lshlrev_b32 v3, 5, v0")
    p("v_add_u32 v3, s37, v3")
    p("v_cndmask_b32 v3, v9, v3, vcc")
    p("s_movk_i32 s38, 4096"); p("s_movk_i32 s39, 4480")
    p("s_waitcnt lgkmcnt(0)")
    srd(p, 40, 4, SZ_SD); srd(p, 44, 12, SZ_SD, WS_YT); srd(p, 48, 12, SZ_SD, WS_H); srd(p, 52, 12, SZ_SD, WS_HN)
    p(f"s_add_u32 s56, s12, {hex(WS_QST)}")
    p("s_addc_u32 s57, s13, 0")
    p("s_lshl_b32 s58, s14, 6")
    p("s_load_dwordx16 s[16:31], s[56:57], s58")
    for r in range(8):
        so, off = ("0", 896 * r) if r < 5 else ("s39", 896 * (r - 5))
        p(f"buffer_load_dword v{20+r}, v2, s[40:43], {so} offen offset:{off}")
    p("buffer_load_dwordx4 v[12:15], v1, s[44:47], 0 offen")
    p("buffer_load_dwordx4 v[16:19], v1, s[44:47], s38 offen")
    p("s_waitcnt vmcnt(2) lgkmcnt(0)")
    for r in range(8):
        unpack(p, 30 + 2 * r, 31 + 2 * r, 20 + r)
        for ch in range(2):
            p(f"v_subrev_f32 v{46+2*r+ch}, s{16+2*r}, v{30+2*r+ch}")
            p(f"v_mul_f32 v{46+2*r+ch}, s{17+2*r}, v{46+2*r+ch}")
    p("s_waitcnt vmcnt(0)")
    for ch in range(2):
        for e in range(4):
            unpack(p, 62 + 2 * (2 * e) + ch, 62 + 2 * (2 * e + 1) + ch, 12 + 4 * ch + e)
    for r in range(8):
        for ch in range(2):
            p(f"v_fma_f32 v{30+2*r+ch}, v{46+2*r+ch}, v{62+2*r+ch}, v{30+2*r+ch}")
        p(f"v_cvt_pk_bf16_f32 v{20+r}, v{30+2*r}, v{31+2*r}")
    for r in range(8):
        so, off = ("0", 896 * r) if r < 5 else ("s39", 896 * (r - 5))
        p(f"buffer_store_dword v{20+r}, v2, s[48:51], {so} offen offset:{off}")
    for r in range(8):
        unpack(p, 30 + 2 * r, 31 + 2 * r, 20 + r)
        p(f"v_add_f32 v{80+2*r}, v{30+2*r}, v{31+2*r}")
        p(f"v_mul_f32 v{81+2*r}, v{30+2*r}, v{30+2*r}")
        p(f"v_fmac_f32 v{81+2*r}, v{31+2*r}, v{31+2*r}")
    for r in range(8): p(f"v_permlane32_swap_b32 v{80+2*r}, v{81+2*r}")
    for r in range(8): p(f"v_add_f32 v{80+2*r}, v{80+2*r}, v{81+2*r}")
    for k in range(4): p(f"v_permlane16_swap_b32 v{80+4*k}, v{82+4*k}")
    for k in range(4): p(f"v_add_f32 v{80+4*k}, v{80+4*k}, v{82+4*k}")
    for sh in (8, 4, 2, 1):
        for k in range(4): p(f"v_add_f32_dpp v{80+4*k}, v{80+4*k}, v{80+4*k} row_ror:{sh} row_mask:0xf bank_mask:0xf")
    p("v_bfe_u32 v4, v0, 4, 1")
    p("v_lshlrev_b32 v4, 5, v4")
    p("v_bfe_u32 v5, v0, 5, 1")
    p("v_lshl_add_u32 v4, v5, 4, v4")
    p("v_lshrrev_b32 v5, 6, v0")
    p("v_lshl_add_u32 v4, v5, 2, v4")
    p("s_mov_b32 exec_lo, 0x00010001")
    p("s_mov_b32 exec_hi, 0x00010001")
    for k in range(4): p(f"ds_write_b32 v4, v{80+4*k} offset:{64*k}")
    p("s_mov_b64 exec, -1")
    p("v_and_b32 v5, 7, v0")
    p("v_lshlrev_b32 v5, 5, v5")
    p("s_waitcnt lgkmcnt(0)")
    p("s_barrier")
    p("ds_read_b128 v[80:83], v5")
    p("ds_read_b128 v[84:87], v5 offset:16")
    p("s_mov_b32 s58, 0x3b124925")
    p("s_mov_b32 s59, 0x3727c5ac")
    p("s_waitcnt lgkmcnt(0)")
    p("v_add_f32 v80, v80, v81"); p("v_add_f32 v82, v82, v83"); p("v_add_f32 v80, v80, v82")
    p("v_add_f32 v84, v84, v85"); p("v_add_f32 v86, v86, v87"); p("v_add_f32 v84, v84, v86")
    p("v_mul_f32 v80, s58, v80")
    p("v_mul_f32 v84, s58, v84")
    p("v_fma_f32 v84, -v80, v80, v84")
    p("v_max_f32 v84, 0, v84")
    p("v_add_f32 v85, s59, v84")
    p("v_rsq_f32 v85, v85")
    p("s_nop 0")
    p("v_mul_f32 v86, v85, v85")
    p("v_mul_f32 v86, v86, v84")
    p("v_add_f32 v86, s59, v86")
    p("v_rsq_f32 v86, v86")
    p("s_nop 0")
    p("v_mul_f32 v85, v85, v86")
    for r in range(8):
        p(f"v_readlane_b32 s{16+2*r}, v80, {r}")
        p(f"v_readlane_b32 s{17+2*r}, v85, {r}")
    for r in range(8):
        for ch in range(2):
            p(f"v_subrev_f32 v{30+2*r+ch}, s{16+2*r}, v{30+2*r+ch}")
            p(f"v_mul_f32 v{30+2*r+ch}, s{17+2*r}, v{30+2*r+ch}")
    for ch in range(2):
        for e in range(4):
            p(f"v_cvt_pk_bf16_f32 v{12+4*ch+e}, v{30+2*(2*e)+ch}, v{30+2*(2*e+1)+ch}")
    p("buffer_store_dwordx4 v[12:15], v3, s[52:55], 0 offen")
    p("buffer_store_dwordx4 v[16:19], v3, s[52:55], 0 offen offset:16")
    p.label("K3_END")
    p("s_endpgm")

RING = 65536
PART = 17408
G_LDS = RING + 4 * PART
def gemm_core(p, tag, RS, KW, t_is_a, sW, sO):
    N = KW // 16
    p("v_and_b32 v1, 63, v0")
    p("v_lshrrev_b32 v2, 3, v1")
    p("v_and_b32 v3, 7, v1")
    p("v_bfe_u32 v4, v1, 4, 1")
    p("v_lshlrev_b32 v4, 2, v4")
    p("v_xor_b32 v3, v3, v4")
    p(f"s_mul_i32 s62, s32, {KW*RS}")
    p("s_add_u32 s62, s62, s60")
    p(f"v_mul_u32_u24 v2, {RS}, v2")
    p("v_lshl_add_u32 v2, v3, 4, v2")
    p("v_add_u32 v2, s62, v2")
    p(f"v_add_u32 v3, {8*RS-1024}, v2")
    p("v_and_b32 v4, 31, v1")
    p("v_lshrrev_b32 v5, 5, v1")
    p(f"s_mul_i32 s62, s32, {KW//8*7168}")
    p("s_add_u32 s62, s62, s61")
    p("v_mul_u32_u24 v6, 7168, v5")
    p("v_lshl_add_u32 v4, v4, 4, v6")
    p("v_add_u32 v4, s62, v4")
    p("v_bfe_u32 v6, v1, 2, 2")
    p("v_lshlrev_b32 v7, 7, v6")
    p("v_lshl_add_u32 v7, v5, 10, v7")
    p("v_bfe_u32 v8, v1, 4, 1")
    p("v_bfe_u32 v9, v1, 1, 1")
    p("v_lshl_add_u32 v8, v8, 1, v9")
    p("v_lshrrev_b32 v6, 1, v6")
    p("v_lshlrev_b32 v6, 2, v6")
    p("v_xor_b32 v8, v8, v6")
    p("v_lshl_add_u32 v7, v8, 4, v7")
    p("v_and_b32 v9, 1, v1")
    p("v_lshl_add_u32 v7, v9, 3, v7")
    p("s_lshl_b32 s63, s32, 14")
    p("v_add_u32 v7, s63, v7")
    p("v_xor_b32 v8, 64, v7")
    for j in range(64): p(f"v_mov_b32 v{64+j}, 0")
    P, NS = 7, 8
    OR = lambda s: 128 + 8 * s
    TR = lambda b: 192 + 8 * b
    p("s_mov_b32 s64, 0"); p("s_mov_b32 s65, 0")
    def issue(ks):
        s = ks % NS
        p(f"s_add_u32 m0, s63, {2048*s}")
        if ks > 0:
            p(f"s_add_u32 s64, s64, {16*RS}")
            p("s_add_u32 s65, s65, 14336")
        else:
            p("s_nop 0")
        p(f"buffer_load_dwordx4 v2, {sr(sW,4)}, s64 offen lds")
        p(f"buffer_load_dwordx4 v3, {sr(sW,4)}, s64 offen offset:1024 lds")
        p(f"buffer_load_dwordx4 {vr(OR(s),4)}, v4, {sr(sO,4)}, s65 offen")
        p(f"buffer_load_dwordx4 {vr(OR(s)+4,4)}, v4, {sr(sO,4)}, s65 offen offset:512")
    def trread(ks):
        s = ks % NS; b = TR(ks % 2)
        for it in range(2):
            for u in range(2):
                p(f"ds_read_b64_tr_b16 {vr(b+4*it+2*u,2)}, v{7+it} offset:{2048*s+512*u}")
    return N, P, NS, OR, TR, issue, trread

def gemm_loop(p, N, P, NS, OR, TR, issue, trread, t_is_a, extra_vm=0):
    for ks in range(P): issue(ks)
    p(f"s_waitcnt vmcnt({4*(P-1)}) lgkmcnt(0)")
    trread(0)
    for ks in range(N):
        if ks + P < N: issue(ks + P)
        if ks + 1 < N:
            p(f"s_waitcnt vmcnt({4*(min(ks+P, N-1)-(ks+1))})")
            trread(ks + 1)
            p("s_waitcnt lgkmcnt(4)")
        else:
            p("s_waitcnt lgkmcnt(0)")
        s = ks % NS; tb = TR(ks % 2); ob = OR(s)
        for it in range(2):
            for jt in range(2):
                if t_is_a:
                    acc = 64 + 16 * (2 * it + jt)
                    p(f"v_mfma_f32_32x32x16_bf16 {vr(acc,16)}, {vr(tb+4*it,4)}, {vr(ob+4*jt,4)}, {vr(acc,16)}")
                else:
                    acc = 64 + 16 * (2 * it + jt)
                    p(f"v_mfma_f32_32x32x16_bf16 {vr(acc,16)}, {vr(ob+4*it,4)}, {vr(tb+4*jt,4)}, {vr(acc,16)}")

def gemm_partials(p):
    p("v_and_b32 v1, 31, v0")
    p("v_bfe_u32 v2, v0, 5, 1")
    p("v_mul_u32_u24 v1, 272, v1")
    p("v_lshl_add_u32 v1, v2, 4, v1")
    p(f"s_mul_i32 s62, s32, {PART}")
    p(f"s_add_u32 s62, s62, {RING}")
    p("v_add_u32 v1, s62, v1")
    for it in range(2):
        for jt in range(2):
            acc = 64 + 16 * (2 * it + jt)
            for r4 in range(4):
                off = jt * 32 * 272 + (32 * it + 8 * r4) * 4
                p(f"ds_write_b128 v1, {vr(acc+4*r4,4)} offset:{off}")
    p("s_waitcnt lgkmcnt(0)")
    p("s_barrier")

def reduce_reads(p, vaddr, dst):
    for w in range(4):
        p(f"ds_read_b128 {vr(128+8*w,4)}, v{vaddr} offset:{PART*w}")
        p(f"ds_read_b128 {vr(132+8*w,4)}, v{vaddr} offset:{PART*w+16}")
    p("s_waitcnt lgkmcnt(0)")
    for e in range(8):
        p(f"v_add_f32 v{128+e}, v{128+e}, v{136+e}")
        p(f"v_add_f32 v{144+e}, v{144+e}, v{152+e}")
    for e in range(8): p(f"v_add_f32 v{dst+e}, v{128+e}, v{144+e}")

def k4(p):
    p("s_cmp_ge_u32 s2, 196")
    p("s_cbranch_scc1 K4_END")
    p("s_load_dwordx4 s[4:7], s[0:1], 56")
    p("s_load_dwordx2 s[12:13], s[0:1], 104")
    p("s_and_b32 s14, s2, 7")
    p("s_lshr_b32 s15, s2, 3")
    p("s_mul_i32 s16, s14, 24")
    p("s_min_u32 s17, s14, 4")
    p("s_add_u32 s16, s16, s17")
    p("s_add_u32 s16, s16, s15")
    p("s_mul_i32 s17, s16, 9363")
    p("s_lshr_b32 s17, s17, 16")
    p("s_mul_i32 s18, s17, 7")
    p("s_sub_u32 s18, s16, s18")
    p("s_lshl_b32 s60, s17, 7")
    p("s_lshl_b32 s61, s18, 10")
    p("v_lshrrev_b32 v2, 6, v0")
    p("s_nop 0")
    p("v_readfirstlane_b32 s32, v2")
    p("s_waitcnt lgkmcnt(0)")
    srd(p, 20, 4, S * F * 2); srd(p, 24, 12, SZ_SD, WS_HN); srd(p, 28, 12, SZ_U, WS_U)
    p("s_lshl_b32 s33, s32, 5")
    p("s_add_u32 s33, s33, s60")
    p("s_load_dwordx8 s[36:43], s[6:7], s33")
    core = gemm_core(p, "k4", F * 2, 512, True, 20, 24)
    gemm_loop(p, *core, True)
    gemm_partials(p)
    p("v_and_b32 v1, 63, v0")
    p("v_mul_u32_u24 v2, 272, v1")
    p("s_lshl_b32 s62, s32, 6")
    p(f"s_add_u32 s62, s62, {RING}")
    p("v_add_u32 v2, s62, v2")
    p("v_add_u32 v3, 32, v2")
    p("s_lshl_b32 s62, s17, 3")
    p("s_lshl_b32 s63, s32, 1")
    p("s_add_u32 s62, s62, s63")
    p("s_mul_i32 s62, s62, 7168")
    p("s_add_u32 s62, s62, s61")
    p("v_lshl_add_u32 v4, v1, 4, s62")
    p("s_movk_i32 s63, 7168")
    for j in range(8):
        p(f"s_lshl_b32 s{44+2*j}, s{36+j}, 16")
        p(f"s_and_b32 s{45+2*j}, s{36+j}, 0xffff0000")
    p("s_mov_b32 s34, 0xc0135761")
    p("s_mov_b32 s35, 0xbdd2d3e8")
    for u in range(2):
        reduce_reads(p, 2 + u, 10)
        for e in range(8): p(f"v_add_f32 v{10+e}, s{44+8*u+e}, v{10+e}")
        for e in range(8): p(f"v_mul_f32 v{20+e}, v{10+e}, v{10+e}")
        p("v_mov_b32 v28, s34")
        for e in range(8): p(f"v_fma_f32 v{20+e}, v{20+e}, s35, v28")
        for e in range(8): p(f"v_mul_f32 v{20+e}, v{20+e}, v{10+e}")
        for e in range(8): p(f"v_exp_f32 v{20+e}, v{20+e}")
        for e in range(8): p(f"v_add_f32 v{20+e}, 1.0, v{20+e}")
        for e in range(8): p(f"v_rcp_f32 v{20+e}, v{20+e}")
        for e in range(8): p(f"v_mul_f32 v{10+e}, v{10+e}, v{20+e}")
        for e in range(4): p(f"v_cvt_pk_bf16_f32 v{32+4*u+e}, v{10+2*e}, v{11+2*e}")
        p(f"buffer_store_dwordx4 {vr(32+4*u,4)}, v4, s[28:31], {'0' if u == 0 else 's63'} offen")
    p.label("K4_END")
    p("s_endpgm")

def k5(p):
    p("s_cmp_ge_u32 s2, 224")
    p("s_cbranch_scc1 K5_END")
    p("s_load_dwordx4 s[4:7], s[0:1], 72")
    p("s_load_dwordx2 s[8:9], s[0:1], 88")
    p("s_load_dwordx2 s[12:13], s[0:1], 104")
    p("s_and_b32 s14, s2, 7")
    p("s_lshr_b32 s15, s2, 3")
    p("s_mul_i32 s17, s15, 9363")
    p("s_lshr_b32 s17, s17, 16")
    p("s_mul_i32 s18, s17, 7")
    p("s_sub_u32 s18, s15, s18")
    p("s_lshl_b32 s14, s14, 2")
    p("s_add_u32 s17, s14, s17")
    p("s_lshl_b32 s60, s17, 7")
    p("s_lshl_b32 s61, s18, 10")
    p("v_lshrrev_b32 v2, 6, v0")
    p("s_nop 0")
    p("v_readfirstlane_b32 s32, v2")
    p("s_waitcnt lgkmcnt(0)")
    srd(p, 20, 4, F * S * 2); srd(p, 24, 12, SZ_U, WS_U); srd(p, 28, 12, SZ_SD, WS_H)
    srd(p, 36, 8, SZ_SD); srd(p, 40, 6, S * 2)
    p("v_and_b32 v1, 63, v0")
    p("v_lshrrev_b32 v2, 3, v1")
    p("s_lshl_b32 s33, s17, 6")
    p("s_lshl_b32 s34, s32, 4")
    p("s_add_u32 s33, s33, s34")
    p("v_add_u32 v2, s33, v2")
    p("v_lshlrev_b32 v3, 1, v2")
    p("v_mul_u32_u24 v10, 896, v2")
    p("v_and_b32 v1, 7, v1")
    p("v_lshl_add_u32 v10, v1, 4, v10")
    p("s_lshl_b32 s34, s18, 7")
    p("v_add_u32 v10, s34, v10")
    p("s_movk_i32 s35, 7168")
    p("buffer_load_dwordx4 v[12:15], v10, s[28:31], 0 offen")
    p("buffer_load_dwordx4 v[16:19], v10, s[28:31], s35 offen")
    p("buffer_load_ushort v20, v3, s[40:43], 0 offen")
    p("buffer_load_ushort v21, v3, s[40:43], 0 offen offset:16")
    core = gemm_core(p, "k5", S * 2, 448, False, 20, 24)
    gemm_loop(p, *core, False)
    gemm_partials(p)
    p("v_and_b32 v1, 63, v0")
    p("v_lshrrev_b32 v2, 3, v1")
    p("s_lshl_b32 s62, s32, 4")
    p("v_add_u32 v2, s62, v2")
    p("v_mul_u32_u24 v2, 272, v2")
    p("v_and_b32 v1, 7, v1")
    p("v_lshl_add_u32 v2, v1, 5, v2")
    p(f"v_add_u32 v2, {RING}, v2")
    p(f"v_add_u32 v3, {8*272}, v2")
    for u in range(2):
        reduce_reads(p, 2 + u, 24)
        p(f"v_lshlrev_b32 v{20+u}, 16, v{20+u}")
        for e in range(4): unpack(p, 32 + 2 * e, 33 + 2 * e, 12 + 4 * u + e)
        for e in range(8): p(f"v_add_f32 v{24+e}, v{24+e}, v{20+u}")
        for e in range(8): p(f"v_add_f32 v{24+e}, v{24+e}, v{32+e}")
        for e in range(4): p(f"v_cvt_pk_bf16_f32 v{40+4*u+e}, v{24+2*e}, v{25+2*e}")
        p(f"buffer_store_dwordx4 {vr(40+4*u,4)}, v10, s[36:39], {'0' if u == 0 else 's35'} offen")
    p.label("K5_END")
    p("s_endpgm")

HEADER = open(__file__.replace("gen_v1.py", "header.txt")).read()

def kernel(out, name, body, nv=256):
    p = Prog(); body(p)
    out.append(f".globl {name}\n.p2align 8\n.type {name},@function\n{name}:\n")
    out.append(render(pad_hazards(p.lines)))

def descr(name, nv=256):
    return f""".p2align 6
.amdhsa_kernel {name}
  .amdhsa_next_free_vgpr {nv}
  .amdhsa_next_free_sgpr 102
  .amdhsa_accum_offset {min(nv,256)}
  .amdhsa_group_segment_fixed_size 0
  .amdhsa_kernarg_size 112
  .amdhsa_user_sgpr_count 2
  .amdhsa_user_sgpr_kernarg_segment_ptr 1
  .amdhsa_system_sgpr_workgroup_id_x 1
  .amdhsa_float_denorm_mode_32 3
.end_amdhsa_kernel
"""

def main(path, extra_empty=0):
    ks = [("k1_kernel", k1, 256, 0), ("k2_kernel", k2, 224, K2_LDS), ("k3_kernel", k3, 256, K3_LDS),
          ("k4_kernel", k4, 196, G_LDS), ("k5_kernel", k5, 224, G_LDS)]
    out = [HEADER]
    for n, b, g, lds in ks: out.append(f"; @launch kernel={n} grid=({g},1,1) block=(256,1,1) lds={lds}\n")
    for i in range(extra_empty): out.append(f"; @launch kernel=ke_kernel grid=(256,1,1) block=(256,1,1) lds=0\n")
    out.append('.amdgcn_target "amdgcn-amd-amdhsa--gfx950"\n.text\n')
    for n, b, g, lds in ks: kernel(out, n, b)
    if extra_empty: kernel(out, "ke_kernel", lambda p: p("s_endpgm"))
    out.append('.section .rodata,"a"\n')
    for n, b, g, lds in ks: out.append(descr(n))
    if extra_empty: out.append(descr("ke_kernel"))
    open(path, "w").write("".join(out))

if __name__ == "__main__":
    main(sys.argv[1], int(sys.argv[2]) if len(sys.argv) > 2 else 0)
```

```python
import sys
from asmlib import *

NAME = "sequential_preLN__ssm_conv_h3__mixer_token_mlp__prompt"
S, D, F = 2048, 448, 1792
WS_FLAG, WS_EPOCH = 0x0, 0x8000
WS_XR, WS_YT, WS_H, WS_HN, WS_U, WS_STAMP = 0x100000, 0x300000, 0x500000, 0x700000, 0x900000, 0xC00000
WS_SIZE = 0x1000000
SZ_SD = S * D * 2
BIG = 0x80000000
POLL_CAP = 40000
LX, PL = 0, 1568
LK, CP = 12544, 4160
LE = 12544
LST_Q, LST_H = 46080, 46336
STG = 49152
LDS_BYTES = 163840
DIAG = False
OPT = {}

class K(Prog):
    def __init__(self):
        super().__init__()
        self.nvm = 0
        self.done = 0
        self.nst = 0
        self.stubs = []
        self.uid = 0
    def vm(self, text):
        self(text); self.nvm += 1
        return self.nvm - 1
    def vwait(self, idx, extra=""):
        if idx < self.done and not extra: return
        n = self.nvm - 1 - idx
        n = min(n, 62)
        self(f"s_waitcnt vmcnt({n}) {extra}".strip())
        self.done = max(self.done, self.nvm - n)
    def vwait_all(self, extra=""):
        self(f"s_waitcnt vmcnt(0) {extra}".strip()); self.done = self.nvm
    def lab(self, base):
        self.uid += 1
        return f"{base}_{self.uid}"
    def stamp(self, i):
        if DIAG:
            self("s_memrealtime s[84:85]")
            self("s_waitcnt lgkmcnt(0)")
            self(f"v_writelane_b32 v250, s84, {i}")

def srd(p, dst, ptr, size):
    p(f"s_mov_b32 s{dst}, s{ptr}")
    p(f"s_and_b32 s{dst+1}, s{ptr+1}, 0xffff")
    p(f"s_mov_b32 s{dst+2}, {hex(size)}")
    p(f"s_mov_b32 s{dst+3}, 0x20000")

def unpack(p, lo, hi, src):
    p(f"v_lshlrev_b32 v{lo}, 16, v{src}")
    p(f"v_and_b32 v{hi}, 0xffff0000, v{src}")

def sanitize(p, regs):
    for r in regs: p(f"v_min_u32 v{r}, -2, v{r}")

def check_sent(p, regs, tmp):
    regs = list(regs)
    p(f"v_max3_u32 v{tmp}, v{regs[0]}, v{regs[1]}, v{regs[2]}")
    i = 3
    while i + 1 < len(regs):
        p(f"v_max3_u32 v{tmp}, v{tmp}, v{regs[i]}, v{regs[i+1]}"); i += 2
    if i < len(regs): p(f"v_max_u32 v{tmp}, v{tmp}, v{regs[i]}")
    p(f"v_cmp_eq_u32 vcc, -1, v{tmp}")

def poll(p, name, loads, regs, tmp, sleep0=0, sleep=2, nyoung=0):
    L = p.lab(name); Ld = L + "_ok"
    if sleep0: p(f"s_sleep {sleep0}")
    p("s_mov_b32 s80, 0")
    p.label(L)
    loads()
    p.vwait_all()
    if len(regs) >= 3: check_sent(p, regs, tmp)
    else: p(f"v_cmp_eq_u32 vcc, -1, v{regs[0]}")
    p(f"s_cbranch_vccz {Ld}")
    p("s_add_u32 s80, s80, 1")
    p(f"s_cmp_gt_u32 s80, {POLL_CAP}")
    p(f"s_cbranch_scc1 {Ld}")
    p(f"s_sleep {sleep}")
    p(f"s_branch {L}")
    p.label(Ld)

def poll_flags(p, name, vaddr, vdst, off, first_issued=None, sleep=2):
    L = p.lab(name); Ld = L + "_ok"; Lc = L + "_chk"
    p("s_mov_b32 s80, 0")
    if first_issued is not None:
        p.vwait(first_issued)
        p(f"s_branch {Lc}")
    p.label(L)
    if first_issued is not None:
        p(f"buffer_load_dword v{vdst}, v{vaddr}, s[16:19], 0 offen offset:{off} sc1")
        p("s_waitcnt vmcnt(0)")
    else:
        p.vm(f"buffer_load_dword v{vdst}, v{vaddr}, s[16:19], 0 offen offset:{off} sc1")
        p.vwait_all()
    p.label(Lc)
    p(f"v_cmp_le_i32 vcc, 0, v{vaddr}")
    p(f"v_mov_b32 v{vdst+1}, s3")
    p(f"v_cndmask_b32 v{vdst}, v{vdst+1}, v{vdst}, vcc")
    p(f"v_cmp_ne_u32 vcc, s3, v{vdst}")
    p(f"s_cbranch_vccz {Ld}")
    p("s_add_u32 s80, s80, 1")
    p(f"s_cmp_gt_u32 s80, {POLL_CAP}")
    p(f"s_cbranch_scc1 {Ld}")
    p(f"s_sleep {sleep}")
    p(f"s_branch {L}")
    p.label(Ld)

V_W0, V_W1, V_X0, V_X1, V_T0, V_T1, V_T0B, V_T1B = 24, 25, 26, 27, 28, 29, 30, 31
V_O4A, V_O4B, V_O5A, V_O5B, V_Y, V_HROW, V_HN, V_UST = 32, 33, 34, 35, 36, 37, 38, 39
S_STGW = 61
def dma(p, job, slot):
    mat, k = job
    RS = F * 2 if mat == "w1" else S * 2
    sreg = 82 + (p.nvm & 1)
    p(f"s_add_u32 m0, s{S_STGW}, {slot*8192}")
    p(f"s_mov_b32 s{sreg}, {k*16*RS}")
    v0_, v1_, sr_ = (V_W0, V_W1, "s[20:23]") if mat == "w1" else (V_X0, V_X1, "s[24:27]")
    p.vm(f"buffer_load_dwordx4 v{v0_}, {sr_}, s{sreg} offen lds")
    return p.vm(f"buffer_load_dwordx4 v{v1_}, {sr_}, s{sreg} offen offset:1024 lds")
def tr(p, job, slot):
    mat, k = job
    for tau in range(2):
        va = (V_T0, V_T1)[tau] if slot < 7 else (V_T0B, V_T1B)[tau]
        for u in range(2):
            p(f"ds_read_b64_tr_b16 {ar(8*k+4*tau+2*u,2)}, v{va} offset:{(slot%7)*8192+512*u}")

def row_stats(p, base, lds, finish):
    for r in range(8): p(f"v_permlane32_swap_b32 v{base+2*r}, v{base+2*r+1}")
    for r in range(8): p(f"v_add_f32 v{base+2*r}, v{base+2*r}, v{base+2*r+1}")
    for k in range(4): p(f"v_permlane16_swap_b32 v{base+4*k}, v{base+4*k+2}")
    for k in range(4): p(f"v_add_f32 v{base+4*k}, v{base+4*k}, v{base+4*k+2}")
    for sh in (8, 4, 2, 1):
        for k in range(4): p(f"v_add_f32_dpp v{base+4*k}, v{base+4*k}, v{base+4*k} row_ror:{sh} row_mask:0xf bank_mask:0xf")
    p("v_bfe_u32 v4, v0, 4, 1")
    p("v_lshlrev_b32 v4, 5, v4")
    p("v_bfe_u32 v5, v0, 5, 1")
    p("v_lshl_add_u32 v4, v5, 4, v4")
    p("v_lshrrev_b32 v5, 6, v0")
    p("v_lshl_add_u32 v4, v5, 2, v4")
    p("s_mov_b32 exec_lo, 0x00010001")
    p("s_mov_b32 exec_hi, 0x00010001")
    for k in range(4): p(f"ds_write_b32 v4, v{base+4*k} offset:{lds+64*k}")
    p("s_mov_b64 exec, -1")
    p("v_and_b32 v5, 7, v0")
    p("v_lshlrev_b32 v5, 5, v5")
    p("s_waitcnt lgkmcnt(0)")
    p("s_barrier")
    p(f"ds_read_b128 {vr(base,4)}, v5 offset:{lds}")
    p(f"ds_read_b128 {vr(base+4,4)}, v5 offset:{lds+16}")
    p("s_mov_b32 s62, 0x3b124925")
    p("s_mov_b32 s63, 0x3727c5ac")
    p("s_waitcnt lgkmcnt(0)")
    b = base
    p(f"v_add_f32 v{b}, v{b}, v{b+1}"); p(f"v_add_f32 v{b+2}, v{b+2}, v{b+3}")
    p(f"v_add_f32 v{b+4}, v{b+4}, v{b+5}"); p(f"v_add_f32 v{b+6}, v{b+6}, v{b+7}")
    p(f"v_add_f32 v{b}, v{b}, v{b+2}"); p(f"v_add_f32 v{b+4}, v{b+4}, v{b+6}")
    p(f"v_mul_f32 v{b}, s62, v{b}")
    p(f"v_mul_f32 v{b+4}, s62, v{b+4}")
    p(f"v_fma_f32 v{b+4}, -v{b}, v{b}, v{b+4}")
    p(f"v_max_f32 v{b+4}, 0, v{b+4}")
    p(f"v_add_f32 v{b+5}, s63, v{b+4}")
    p(f"v_rsq_f32 v{b+5}, v{b+5}")
    finish(b)
    for r in range(8):
        p(f"v_readlane_b32 s{64+2*r}, v{b}, {r}")
        p(f"v_readlane_b32 s{65+2*r}, v{b+5}, {r}")

def q_loads(p):
    srd(p, 68, 4, SZ_SD)
    p("s_mul_i32 s62, s55, 7168")
    p("v_lshlrev_b32 v2, 2, v0")
    p("v_add_u32 v2, s62, v2")
    p("v_cmp_gt_u32 vcc, 224, v0")
    p(f"v_cndmask_b32 v{V_HROW}, v249, v2, vcc")
    p("v_lshlrev_b32 v2, 5, v0")
    p("v_add_u32 v2, s62, v2")
    p(f"v_cndmask_b32 v{V_HN}, v249, v2, vcc")
    p("s_lshl_b32 s63, s55, 4")
    p("v_lshlrev_b32 v2, 13, v0")
    p("v_add_u32 v2, s63, v2")
    p(f"v_cndmask_b32 v{V_Y}, v249, v2, vcc")
    p("s_movk_i32 s62, 4480")
    last = None
    for r in range(8):
        so, off = ("0", 896 * r) if r < 5 else ("s62", 896 * (r - 5))
        last = p.vm(f"buffer_load_dword v{8+r}, v{V_HROW}, s[68:71], {so} offen offset:{off}")
    return last

def q_stats(p):
    p("s_mov_b32 s62, 0x3f803f80")
    for r in range(8):
        p(f"v_dot2_f32_bf16 v{208+2*r}, v{8+r}, s62, 0")
        p(f"v_dot2_f32_bf16 v{209+2*r}, v{8+r}, v{8+r}, 0")
    p("s_nop 2")
    row_stats(p, 208, LST_Q, lambda b: p("s_nop 0"))

def init_stores(p, regions):
    ids = []
    for j in range(4): p(f"v_mov_b32 v{4+j}, -1")
    for (v, reg, offs) in regions:
        for off in offs:
            so, io = (reg + off, 0) if off >= 4096 else (reg, off)
            sreg = 82 + (p.nvm & 1)
            p(f"s_mov_b32 s{sreg}, {hex(so)}")
            ids.append(p.vm(f"buffer_store_dwordx4 v[4:7], v{v}, s[16:19], s{sreg} offen offset:{io} sc1"))
    return ids[-1]

def publish(p, off):
    L = p.lab("PUB")
    p("s_cmp_lg_u32 s52, 0")
    p(f"s_cbranch_scc1 {L}")
    p("s_lshl_b32 s62, s2, 7")
    p("v_mov_b32 v2, s3")
    p("s_mov_b64 exec, 1")
    p.vm_noacct = True
    p(f"buffer_store_dword v2, off, s[16:19], s62 offset:{off} sc1")
    p("s_mov_b64 exec, -1")
    p.label(L)
    p.extra_w0 = True

def p3(p, cpath):
    def loads():
        p(f"s_mov_b32 s82, {hex(WS_YT)}"); p(f"s_mov_b32 s83, {hex(WS_YT+4096)}")
        p.vm(f"buffer_load_dwordx4 v[192:195], v{V_Y}, s[16:19], s82 offen sc1")
        p.vm(f"buffer_load_dwordx4 v[196:199], v{V_Y}, s[16:19], s83 offen sc1")
    for r in range(8):
        unpack(p, 208 + 2 * r, 209 + 2 * r, 8 + r)
        for ch in range(2):
            p(f"v_subrev_f32 v{46+2*r+ch}, s{64+2*r}, v{208+2*r+ch}")
            p(f"v_mul_f32 v{46+2*r+ch}, s{65+2*r}, v{46+2*r+ch}")
    poll(p, "PY", loads, range(192, 200), 200, sleep0=OPT.get("sl_y0", 0), sleep=OPT.get("sl_y", 4))
    p.stamp(10)
    for ch in range(2):
        for e in range(4):
            unpack(p, 224 + 2 * (2 * e) + ch, 224 + 2 * (2 * e + 1) + ch, 192 + 4 * ch + e)
    for r in range(8):
        for ch in range(2):
            p(f"v_fma_f32 v{208+2*r+ch}, v{46+2*r+ch}, v{224+2*r+ch}, v{208+2*r+ch}")
        p(f"v_cvt_pk_bf16_f32 v{8+r}, v{208+2*r}, v{209+2*r}")
    sanitize(p, range(8, 16))
    p(f"s_mov_b32 s82, {hex(WS_H)}"); p(f"s_mov_b32 s83, {hex(WS_H+4480)}")
    for r in range(8):
        so, off = ("s82", 896 * r) if r < 5 else ("s83", 896 * (r - 5))
        p.vm(f"buffer_store_dword v{8+r}, v{V_HROW}, s[16:19], {so} offen offset:{off} sc1")
    for r in range(8):
        unpack(p, 208 + 2 * r, 209 + 2 * r, 8 + r)
        p(f"v_add_f32 v{224+2*r}, v{208+2*r}, v{209+2*r}")
        p(f"v_mul_f32 v{225+2*r}, v{208+2*r}, v{208+2*r}")
        p(f"v_fmac_f32 v{225+2*r}, v{209+2*r}, v{209+2*r}")
    def fin(b):
        p("s_nop 0")
        p(f"v_mul_f32 v{b+6}, v{b+5}, v{b+5}")
        p(f"v_mul_f32 v{b+6}, v{b+6}, v{b+4}")
        p(f"v_add_f32 v{b+6}, s63, v{b+6}")
        p(f"v_rsq_f32 v{b+6}, v{b+6}")
        p("s_nop 0")
        p(f"v_mul_f32 v{b+5}, v{b+5}, v{b+6}")
    row_stats(p, 224, LST_H, fin)
    for r in range(8):
        for ch in range(2):
            p(f"v_subrev_f32 v{208+2*r+ch}, s{64+2*r}, v{208+2*r+ch}")
            p(f"v_mul_f32 v{208+2*r+ch}, s{65+2*r}, v{208+2*r+ch}")
    for ch in range(2):
        for e in range(4):
            p(f"v_cvt_pk_bf16_f32 v{192+4*ch+e}, v{208+2*(2*e)+ch}, v{208+2*(2*e+1)+ch}")
    sanitize(p, range(192, 200))
    p(f"s_mov_b32 s82, {hex(WS_HN)}")
    p.vm(f"buffer_store_dwordx4 v[192:195], v{V_HN}, s[16:19], s82 offen sc1")
    p.vm(f"buffer_store_dwordx4 v[196:199], v{V_HN}, s[16:19], s82 offen offset:16 sc1")
    p.stamp(11)

def flagB_addr(p):
    p("v_lshlrev_b32 v40, 7, v0")

def epoch_update(p):
    L = p.lab("EPU")
    p("s_cmp_lg_u32 s2, 0")
    p(f"s_cbranch_scc1 {L}")
    p("s_cmp_lg_u32 s52, 0")
    p(f"s_cbranch_scc1 {L}")
    p(f"s_mov_b32 s62, {hex(WS_EPOCH)}")
    p("v_mov_b32 v2, s3")
    p("s_mov_b64 exec, 1")
    p("buffer_store_dword v2, off, s[16:19], s62 sc1")
    p("s_mov_b64 exec, -1")
    p.label(L)

ACC = lambda b: 64 + 16 * b
OR = lambda s: 128 + 8 * s
NS, PD = 8, 7
def gemm_loop(p, tag, N, va, vb, region, t_is_a, hook):
    ids = {}
    def issue(ks):
        s = ks % NS
        sreg = 82 + (ks & 1)
        p(f"s_mov_b32 s{sreg}, {hex(region + ks*14336)}")
        p.vm(f"buffer_load_dwordx4 {vr(OR(s),4)}, v{va}, s[16:19], s{sreg} offen sc1")
        ids[ks] = p.vm(f"buffer_load_dwordx4 {vr(OR(s)+4,4)}, v{vb}, s[16:19], s{sreg} offen sc1")
    def check(ks):
        s = ks % NS; b = OR(s)
        p(f"v_max3_u32 v40, v{b}, v{b+1}, v{b+2}")
        p(f"v_max3_u32 v41, v{b+3}, v{b+4}, v{b+5}")
        p(f"v_max3_u32 v40, v40, v{b+6}, v{b+7}")
        p("v_max_u32 v40, v40, v41")
        p("v_cmp_eq_u32 vcc, -1, v40")
        St = f"{tag}_RETRY{ks}"; Bk = f"{tag}_BACK{ks}"
        p(f"s_cbranch_vccnz {St}")
        p.label(Bk)
        q = Prog()
        q.label(St)
        q("s_mov_b32 s80, 0")
        q.label(St + "_L")
        q("s_add_u32 s80, s80, 1")
        q(f"s_cmp_gt_u32 s80, {POLL_CAP}")
        q(f"s_cbranch_scc1 {Bk}")
        q(f"s_mov_b32 s81, {hex(region + ks*14336)}")
        q("s_sleep 2")
        q(f"buffer_load_dwordx4 {vr(b,4)}, v{va}, s[16:19], s81 offen sc1")
        q(f"buffer_load_dwordx4 {vr(b+4,4)}, v{vb}, s[16:19], s81 offen sc1")
        q("s_waitcnt vmcnt(0)")
        q(f"v_max3_u32 v40, v{b}, v{b+1}, v{b+2}")
        q(f"v_max3_u32 v41, v{b+3}, v{b+4}, v{b+5}")
        q(f"v_max3_u32 v40, v40, v{b+6}, v{b+7}")
        q("v_max_u32 v40, v40, v41")
        q("v_cmp_eq_u32 vcc, -1, v40")
        q(f"s_cbranch_vccnz {St}_L")
        q(f"s_branch {Bk}")
        p.stubs.append(q)
    def mfma(ks, tau, om):
        s = ks % NS; acc = ACC(tau + 2 * om)
        T = ar(8 * ks + 4 * tau, 4); O = vr(OR(s) + 4 * om, 4)
        c = vr(acc, 16) if ks > 0 else "0"
        if t_is_a: p(f"v_mfma_f32_32x32x16_bf16 {vr(acc,16)}, {T}, {O}, {c}")
        else: p(f"v_mfma_f32_32x32x16_bf16 {vr(acc,16)}, {O}, {T}, {c}")
    for ks in range(PD): issue(ks)
    hook("pre", -1)
    p.vwait(ids[0]); check(0)
    for ks in range(N):
        if ks + PD < N: issue(ks + PD)
        hook("top", ks)
        mfma(ks, 0, 0); mfma(ks, 1, 0)
        if ks + 1 < N:
            p.vwait(ids[ks + 1])
        mfma(ks, 0, 1)
        if ks + 1 < N:
            mark = len(p.lines)
            check(ks + 1)
            chk = p.lines[mark:]; del p.lines[mark:]
            p.lines += chk[:3]
            mfma(ks, 1, 1)
            p.lines += chk[3:]
        else:
            mfma(ks, 1, 1)
        hook("end", ks)

def gemm_reduce(p):
    p("v_and_b32 v1, 63, v0")
    p("v_lshlrev_b32 v1, 4, v1")
    for m in range(1, 4):
        p(f"s_xor_b32 s62, s52, {m}")
        p("s_mul_i32 s62, s62, 12288")
        p(f"v_add_u32 v{1+m}, s62, v1")
    p("s_mul_i32 s62, s52, 12288")
    p("v_add_u32 v1, s62, v1")
    p("s_barrier")
    for m in range(1, 4):
        for j in range(4):
            p(f"ds_write_b128 v{1+m}, {vr(ACC(m)+4*j,4)} offset:{(m-1)*4096+1024*j}")
    p("s_waitcnt lgkmcnt(0)")
    p("s_barrier")
    for m in range(1, 4):
        for j in range(4):
            p(f"ds_read_b128 {vr(ACC(m)+4*j,4)}, v1 offset:{(m-1)*4096+1024*j}")
    p("s_waitcnt lgkmcnt(4)")
    for j in range(16): p(f"v_add_f32 v{ACC(1)+j}, v{ACC(1)+j}, v{ACC(2)+j}")
    p("s_waitcnt lgkmcnt(0)")
    for j in range(16): p(f"v_add_f32 v{ACC(0)+j}, v{ACC(0)+j}, v{ACC(3)+j}")
    for j in range(16): p(f"v_add_f32 v{ACC(0)+j}, v{ACC(0)+j}, v{ACC(1)+j}")

def main_kernel(p):
    p("s_cmp_ge_u32 s2, 256")
    p("s_cbranch_scc1 END")
    p("s_load_dwordx8 s[4:11], s[0:1], 0")
    p("s_load_dwordx4 s[12:15], s[0:1], 32")
    p("s_load_dwordx16 s[36:51], s[0:1], 48")
    if DIAG: p("v_mov_b32 v250, 0")
    p(f"v_mov_b32 v249, {hex(BIG)}")
    p.stamp(0)
    p("v_lshrrev_b32 v1, 6, v0")
    p("s_and_b32 s53, s2, 7")
    p("s_lshr_b32 s54, s2, 3")
    p("v_readfirstlane_b32 s52, v1")
    p("s_lshl_b32 s55, s53, 5")
    p("s_add_u32 s55, s55, s54")
    p("s_mul_i32 s56, s53, 24")
    p("s_min_u32 s57, s53, 4")
    p("s_add_u32 s56, s56, s57")
    p("s_add_u32 s62, s56, s54")
    p("s_mul_i32 s57, s62, 9363")
    p("s_lshr_b32 s57, s57, 16")
    p("s_mul_i32 s58, s57, 7")
    p("s_sub_u32 s58, s62, s58")
    p("s_cmp_lt_u32 s53, 4")
    p("s_cselect_b32 s62, 25, 24")
    p("s_cmp_lt_u32 s54, s62")
    p(f"s_cselect_b32 s95, 0, {hex(BIG)}")
    p("s_mul_i32 s59, s54, 9363")
    p("s_lshr_b32 s59, s59, 16")
    p("s_mul_i32 s60, s59, 7")
    p("s_sub_u32 s60, s54, s60")
    p("s_lshl_b32 s62, s53, 2")
    p("s_add_u32 s59, s62, s59")
    p("s_lshl_b32 s61, s52, 11")
    p(f"s_add_u32 s{S_STGW}, s{S_STGW}, {STG}")
    p("s_lshr_b32 s86, s2, 5")
    p("s_and_b32 s87, s2, 31")
    p("v_and_b32 v3, 7, v0")
    p("v_lshrrev_b32 v4, 3, v0")
    p("s_mul_i32 s62, s87, 57344")
    p("s_lshl_b32 s63, s86, 7")
    p("s_add_u32 s62, s62, s63")
    p("v_mul_u32_u24 v128, 7168, v3")
    p("v_lshl_add_u32 v128, v4, 2, v128")
    p("v_add_u32 v128, s62, v128")
    p("v_subrev_u32 v129, 2688, v128")
    p("v_cmp_gt_u32 vcc, 2688, v128")
    p("v_cndmask_b32 v129, v129, v249, vcc")
    p("s_lshl_b32 s62, s86, 9")
    p("v_lshl_add_u32 v149, v4, 4, s62")
    p("s_lshl_b32 s62, s86, 18")
    p("s_lshl_b32 s63, s87, 7")
    p("s_add_u32 s62, s62, s63")
    p("v_lshlrev_b32 v150, 13, v4")
    p("v_lshl_add_u32 v150, v3, 4, v150")
    p("v_add_u32 v150, s62, v150")
    p("s_waitcnt lgkmcnt(0)")
    p.stamp(1)
    srd(p, 16, 50, WS_SIZE)
    p(f"s_mov_b32 s62, {hex(WS_EPOCH)}")
    id_ep = p.vm("buffer_load_dword v151, off, s[16:19], s62 sc1")
    p("s_cmp_ge_u32 s2, 224")
    p("s_cbranch_scc1 CPATH")
    nvm0, done0 = p.nvm, p.done
    id_xi = init_stores(p, [(150, WS_XR, (0, 4096))])
    srd(p, 28, 6, SZ_SD); srd(p, 32, 8, SZ_SD); srd(p, 64, 10, D * 8)
    p("s_movk_i32 s62, 4480")
    id_sk = p.vm("buffer_load_dwordx4 v[152:155], v149, s[64:67], 0 offen")
    for j in range(3): p.vm(f"buffer_load_dword v{130+j}, v129, s[28:31], 0 offen offset:{896*j}")
    for r in range(8):
        so, off = ("0", 896 * r) if r < 5 else ("s62", 896 * (r - 5))
        id_k = p.vm(f"buffer_load_dword v{133+r}, v128, s[28:31], {so} offen offset:{off}")
    for r in range(8):
        so, off = ("0", 896 * r) if r < 5 else ("s62", 896 * (r - 5))
        id_v = p.vm(f"buffer_load_dword v{141+r}, v128, s[32:35], {so} offen offset:{off}")
    id_q = q_loads(p)
    srd(p, 72, 12, SZ_SD)
    p("v_lshrrev_b32 v2, 7, v0")
    p("v_and_b32 v3, 127, v0")
    p("s_lshl_b32 s62, s2, 13")
    p("v_lshlrev_b32 v4, 12, v2")
    p("v_add_u32 v4, s62, v4")
    p("v_lshl_add_u32 v108, v3, 4, v4")
    p("v_subrev_u32 v88, 64, v108")
    p("v_cmp_gt_u32 vcc, 4, v3")
    p("v_cndmask_b32 v88, v88, v249, vcc")
    p("v_add_u32 v91, 4032, v108")
    p("v_cndmask_b32 v91, v249, v91, vcc")
    p("v_subrev_u32 v89, 48, v108")
    p("v_cmp_gt_u32 vcc, 3, v3")
    p("v_cndmask_b32 v89, v89, v249, vcc")
    p("v_add_u32 v92, 4048, v108")
    p("v_cndmask_b32 v92, v249, v92, vcc")
    p("v_add_u32 v90, 1984, v108")
    p.vm("buffer_load_dwordx4 v[64:67], v88, s[72:75], 0 offen")
    p.vm("buffer_load_dwordx2 v[68:69], v89, s[72:75], 0 offen")
    p.vm("buffer_load_dwordx4 v[72:75], v90, s[72:75], 0 offen")
    p.vm("buffer_load_dwordx2 v[76:77], v90, s[72:75], 0 offen offset:16")
    p.vm("buffer_load_dwordx4 v[80:83], v91, s[72:75], 0 offen")
    id_f = p.vm("buffer_load_dwordx2 v[84:85], v92, s[72:75], 0 offen")
    p("s_lshl_b32 s63, s2, 2")
    p("s_load_dword s88, s[14:15], s63")
    srd(p, 20, 38, S * F * 2); srd(p, 24, 42, F * S * 2)
    touch_w1(p)
    weight_addr(p)
    p.vwait(id_xi)
    p("v_readfirstlane_b32 s3, v151")
    p("s_add_u32 s3, s3, 0x9e3779b9")
    p("s_barrier")
    publish(p, 0)
    nb1 = OPT.get("nb1", 14)
    idB1 = None
    for k in range(nb1): idB1 = dma(p, ("w1", k), k)
    p.vwait(id_sk)
    p("v_lshlrev_b32 v156, 16, v152"); p("v_lshlrev_b32 v157, 16, v154")
    p("v_and_b32 v158, 0xffff0000, v152"); p("v_and_b32 v159, 0xffff0000, v154")
    p("v_lshlrev_b32 v160, 16, v153"); p("v_lshlrev_b32 v161, 16, v155")
    p("v_and_b32 v162, 0xffff0000, v153"); p("v_and_b32 v163, 0xffff0000, v155")
    p.vwait(id_k)
    for r in range(11): unpack(p, 164 + 2 * r, 165 + 2 * r, 130 + r)
    for r in range(8):
        x = 202 + 2 * r
        Kp = lambda i: vr(164 + 2 * i, 2)
        p(f"v_pk_mul_f32 {vr(x,2)}, {Kp(r+3)}, v[156:157]")
        p(f"v_pk_fma_f32 {vr(x,2)}, {Kp(r+2)}, v[158:159], {vr(x,2)}")
        p(f"v_pk_fma_f32 {vr(x,2)}, {Kp(r+1)}, v[160:161], {vr(x,2)}")
        p(f"v_pk_fma_f32 {vr(x,2)}, {Kp(r)}, v[162:163], {vr(x,2)}")
    p.vwait(id_v)
    p.stamp(2)
    for r in range(8): unpack(p, 186 + 2 * r, 187 + 2 * r, 141 + r)
    for r in range(8): p(f"v_pk_mul_f32 {vr(202+2*r,2)}, {vr(202+2*r,2)}, {vr(186+2*r,2)}")
    for ch in range(2):
        for e in range(4):
            p(f"v_cvt_pk_bf16_f32 v{220+4*ch+e}, v{202+2*(7-2*e)+ch}, v{202+2*(6-2*e)+ch}")
    sanitize(p, range(220, 228))
    p(f"s_mov_b32 s82, {hex(WS_XR)}"); p(f"s_mov_b32 s83, {hex(WS_XR+4096)}")
    p.vm("buffer_store_dwordx4 v[220:223], v150, s[16:19], s82 offen sc1")
    p.vm("buffer_store_dwordx4 v[224:227], v150, s[16:19], s83 offen sc1")
    p.stamp(3)
    p("v_and_b32 v2, 63, v0")
    p("s_lshl_b32 s62, s86, 12")
    p("v_lshl_add_u32 v42, v2, 7, s62")
    p("v_cmp_gt_u32 vcc, 32, v2")
    p("v_cndmask_b32 v42, v249, v42, vcc")
    id_fa = p.vm("buffer_load_dword v43, v42, s[16:19], 0 offen sc1")
    p("v_lshrrev_b32 v2, 7, v0")
    p("v_and_b32 v3, 127, v0")
    p("v_lshrrev_b32 v12+0, 5, v3".replace("v12+0", "v93"))
    p("v_and_b32 v94, 31, v3")
    p("v_mul_u32_u24 v95, 6272, v2")
    p(f"v_mul_u32_u24 v93, {PL}, v93")
    p("v_add_u32 v93, v93, v95")
    p("v_lshl_add_u32 v93, v94, 4, v93")
    for j in range(4): p(f"v_mov_b32 v{96+j}, 0")
    p("ds_write_b128 v93, v[96:99]")
    p("v_and_b32 v109, 3, v3")
    p(f"v_mul_u32_u24 v109, {PL}, v109")
    p("v_add_u32 v109, v109, v95")
    p("v_lshrrev_b32 v94, 2, v3")
    p("v_lshl_add_u32 v109, v94, 4, v109")
    p(f"v_mul_u32_u24 v110, {4*CP}, v2")
    p("v_lshl_add_u32 v110, v3, 4, v110")
    p(f"v_add_u32 v110, {LK}, v110")
    p.vwait(id_f)
    for r, w in enumerate((64, 72, 80)):
        if r == 2:
            p("v_cmp_gt_u32 vcc, 4, v3")
            p("s_and_saveexec_b64 s[62:63], vcc")
            p("s_cbranch_execz SKIP3")
        for i in range(4): p(f"v_alignbit_b32 v{112+i}, v{w+i+1}, v{w+i}, 16")
        for i in range(4): p(f"v_mov_b32 v{116+i}, v{w+1+i}")
        for i in range(4): p(f"v_alignbit_b32 v{120+i}, v{w+i+2}, v{w+i+1}, 16")
        p(f"ds_write_b128 v110, v[112:115] offset:{0*CP + 2048*r}")
        p(f"ds_write_b128 v110, v[116:119] offset:{1*CP + 2048*r}")
        p(f"ds_write_b128 v110, v[120:123] offset:{2*CP + 2048*r}")
        p(f"ds_write_b128 v110, {vr(w+2,4)} offset:{3*CP + 2048*r}")
        if r == 2:
            p.label("SKIP3")
            p("s_mov_b64 exec, s[62:63]")
        p("s_nop 1")
    p.vwait(id_q)
    q_stats(p)
    p.vwait(idB1)
    for k in range(nb1): tr(p, ("w1", k), k)
    poll_flags(p, "CA", 42, 43, 0, first_issued=id_fa)
    p.stamp(4)
    def xloads():
        p(f"s_mov_b32 s82, {hex(WS_XR)}")
        p.vm("buffer_load_dwordx4 v[100:103], v108, s[16:19], s82 offen sc1")
        p.vm("buffer_load_dwordx4 v[104:107], v108, s[16:19], s82 offen offset:2048 sc1")
    poll(p, "PX", xloads, range(100, 108), 111, sleep0=OPT.get("sl_x0", 0), sleep=OPT.get("sl_x", 2))
    p.stamp(5)
    p("ds_write_b128 v109, v[100:103] offset:512")
    p("ds_write_b128 v109, v[104:107] offset:1024")
    u_store_addr(p)
    p("v_lshlrev_b32 v2, 5, v0")
    p("s_lshl_b32 s62, s2, 13")
    p("v_add_u32 v44, s62, v2")
    id_i2 = init_stores(p, [(44, WS_YT, (0, 16)), (V_HN, WS_HN, (0, 16)), (V_HN, WS_H, (0, 16)), (V_UST, WS_U, (0, 14336))])
    p("s_lshr_b32 s89, s52, 1")
    p("s_and_b32 s90, s52, 1")
    p("v_and_b32 v3, 31, v0")
    p("v_bfe_u32 v4, v0, 5, 1")
    p("v_and_b32 v5, 3, v3")
    p(f"v_mul_u32_u24 v5, {CP}, v5")
    p("v_lshrrev_b32 v6, 2, v3")
    p("v_lshl_add_u32 v5, v6, 3, v5")
    p("v_lshl_add_u32 v5, v4, 4, v5")
    p(f"s_mul_i32 s62, s89, {4*CP}")
    p("s_lshl_b32 s63, s90, 5")
    p("s_add_u32 s62, s62, s63")
    p(f"s_add_u32 s62, s62, {LK}")
    p("v_add_u32 v45, s62, v5")
    p("s_lshl_b32 s62, s90, 1")
    p("s_sub_u32 s62, 3, s62")
    p("v_sub_u32 v6, s62, v4")
    p(f"v_mul_u32_u24 v6, {PL}, v6")
    p("v_lshl_add_u32 v6, v3, 4, v6")
    p("s_mul_i32 s91, s89, 6272")
    p("v_add_u32 v46, s91, v6")
    flagB_addr(p)
    p("s_waitcnt lgkmcnt(0)")
    p("s_barrier")
    p.stamp(6)
    A0, A1 = 64, 80
    NSc = 4
    RA = lambda s: 100 + 12 * s
    RB1 = lambda s: 104 + 12 * s
    RB0 = lambda s: 108 + 12 * s
    nreads = lambda d: 4 if d < 32 else 3
    def cissue(d):
        s = d % NSc
        p(f"ds_read_b64 {vr(RA(s),2)}, v45 offset:{64*d}")
        p(f"ds_read_b64 {vr(RA(s)+2,2)}, v45 offset:{64*d+8}")
        p(f"ds_read_b128 {vr(RB1(s),4)}, v46 offset:{(64-d)*16}")
        if d < 32: p(f"ds_read_b128 {vr(RB0(s),4)}, v46 offset:{(32-d)*16}")
    PDc = 3
    b2jobs = [("w1", k) for k in range(nb1, nb1 + OPT.get("nb2", 14))]
    b2at = {OPT.get("b2start", 2) + OPT.get("b2step", 4) * i: j for i, j in enumerate(b2jobs)}
    idB2 = None
    for d in range(PDc): cissue(d)
    for d in range(64):
        later = sum(nreads(e) for e in range(d + 1, min(d + PDc - 1, 63) + 1))
        p(f"s_waitcnt lgkmcnt({later})")
        if d + PDc < 64: cissue(d + PDc)
        s = d % NSc
        c1 = vr(A1, 16) if d > 0 else "0"; c0 = vr(A0, 16) if d > 0 else "0"
        p(f"v_mfma_f32_32x32x16_bf16 {vr(A1,16)}, {vr(RA(s),4)}, {vr(RB1(s),4)}, {c1}")
        if d in b2at: idB2 = dma(p, b2at[d], b2jobs.index(b2at[d]))
        if d < 32: p(f"v_mfma_f32_32x32x16_bf16 {vr(A0,16)}, {vr(RA(s),4)}, {vr(RB0(s),4)}, {c0}")
        if d == OPT.get("f2at", 17):
            p.vwait(id_i2)
            p("s_barrier")
            publish(p, 4)
        if d == 20: touch_w2(p)
        if d == 58: id_fb = p.vm("buffer_load_dword v41, v40, s[16:19], 0 offen offset:4 sc1")
    p("s_nop 7")
    p.stamp(7)
    p("v_and_b32 v7, 63, v0")
    p("v_lshlrev_b32 v7, 4, v7")
    p("s_lshl_b32 s62, s52, 12")
    p(f"s_add_u32 s62, s62, {LE}")
    p("v_add_u32 v47, s62, v7")
    p("s_xor_b32 s63, s52, 1")
    p("s_lshl_b32 s63, s63, 12")
    p(f"s_add_u32 s63, s63, {LE}")
    p("v_add_u32 v48, s63, v7")
    p("s_lshl_b32 s62, s90, 9")
    p("s_add_u32 s62, s62, s91")
    p("s_add_u32 s62, s62, 520")
    p("v_lshlrev_b32 v5, 4, v3")
    p("v_lshlrev_b32 v6, 3, v4")
    p("v_sub_u32 v5, v5, v6")
    p("v_add_u32 v5, s62, v5")
    for r4 in range(4): p(f"ds_read_b64 {vr(100+2*r4,2)}, v5 offset:{PL*r4}")
    p("s_barrier")
    p("s_cmp_eq_u32 s90, 0")
    p("s_cbranch_scc1 CV_H0")
    for j in range(4): p(f"ds_write_b128 v47, {vr(A0+4*j,4)} offset:{1024*j}")
    p("s_nop 1")
    for j in range(16): p(f"v_mov_b32 v{A0+j}, v{A1+j}")
    p("s_branch CV_JOIN")
    p.label("CV_H0")
    for j in range(4): p(f"ds_write_b128 v47, {vr(A1+4*j,4)} offset:{1024*j}")
    p.label("CV_JOIN")
    p("s_lshl_b32 s62, s88, 16")
    p("s_and_b32 s63, s88, 0xffff0000")
    p("s_cmp_eq_u32 s89, 0")
    p("s_cselect_b32 s62, s62, s63")
    p("s_waitcnt lgkmcnt(0)")
    p("s_barrier")
    for j in range(4): p(f"ds_read_b128 {vr(A1+4*j,4)}, v48 offset:{1024*j}")
    for r4 in range(4):
        d0, d1 = 100 + 2 * r4, 101 + 2 * r4
        b = 110 + 4 * r4
        p(f"v_lshlrev_b32 v{b+3}, 16, v{d0}")
        p(f"v_and_b32 v{b+2}, 0xffff0000, v{d0}")
        p(f"v_lshlrev_b32 v{b+1}, 16, v{d1}")
        p(f"v_and_b32 v{b+0}, 0xffff0000, v{d1}")
    for j in range(16): p(f"v_fma_f32 v{A0+j}, v{110+j}, s62, v{A0+j}")
    p("s_waitcnt lgkmcnt(0)")
    for j in range(16): p(f"v_add_f32 v{A0+j}, v{A0+j}, v{A1+j}")
    for r4 in range(4):
        p(f"v_cvt_pk_bf16_f32 v{100+2*r4}, v{A0+4*r4}, v{A0+4*r4+1}")
        p(f"v_cvt_pk_bf16_f32 v{101+2*r4}, v{A0+4*r4+2}, v{A0+4*r4+3}")
    sanitize(p, range(100, 108))
    for u in range(2):
        p(f"v_permlane32_swap_b32 v{100+4*u}, v{102+4*u}")
        p(f"v_permlane32_swap_b32 v{101+4*u}, v{103+4*u}")
    p("s_lshl_b32 s62, s2, 1")
    p("s_add_u32 s62, s62, s89")
    p("s_lshl_b32 s62, s62, 12")
    p("s_lshl_b32 s63, s90, 11")
    p("s_add_u32 s62, s62, s63")
    p("v_and_b32 v5, 15, v0")
    p("v_lshlrev_b32 v5, 6, v5")
    p("v_bfe_u32 v6, v0, 4, 1")
    p("v_lshl_add_u32 v5, v6, 5, v5")
    p("v_bfe_u32 v6, v0, 5, 1")
    p("v_lshl_add_u32 v5, v6, 4, v5")
    p("v_add_u32 v5, s62, v5")
    for i in range(4): p(f"v_permlane16_swap_b32 v{100+i}, v{104+i}")
    p(f"s_mov_b32 s82, {hex(WS_YT)}")
    p.vm("buffer_store_dwordx4 v[100:103], v5, s[16:19], s82 offen sc1")
    p.vm("buffer_store_dwordx4 v[104:107], v5, s[16:19], s82 offen offset:1024 sc1")
    p.stamp(8)
    nw1 = nb1 + len(b2jobs)
    if idB2 is not None:
        p.vwait(idB2)
        for i, j in enumerate(b2jobs): tr(p, j, i)
        p("s_waitcnt lgkmcnt(0)")
    b3 = [("w1", k) for k in range(nw1, 32)] + [("w2", k) for k in range(OPT.get("nw2a", 4))]
    slot_of = {}
    idB3 = None
    for i, j in enumerate(b3):
        slot_of[j] = i; idB3 = dma(p, j, i)
    poll_flags(p, "CB", 40, 41, 4, first_issued=id_fb)
    p.stamp(9)
    p3(p, False)
    epoch_update(p)
    srd(p, 28, 40, F * 2); srd(p, 32, 44, S * 2)
    p("s_lshl_b32 s62, s57, 7")
    p("s_and_b32 s63, s52, 1")
    p("s_lshl_b32 s63, s63, 6")
    p("s_add_u32 s62, s62, s63")
    p("s_or_b32 s62, s62, s95")
    p("v_bfe_u32 v2, v0, 5, 1")
    p("v_lshl_add_u32 v2, v2, 3, s62")
    for r4 in range(4): p.vm(f"buffer_load_dwordx2 {vr(16+2*r4,2)}, v2, s[28:31], 0 offen offset:{16*r4}")
    for j in b3:
        if j[0] == "w1": tr(p, j, slot_of[j])
    p("s_waitcnt lgkmcnt(0)")
    nfree = [i for i in range(14) if i not in [slot_of[j] for j in b3 if j[0] == "w2"]]
    b3b = [("w2", k) for k in range(OPT.get("nw2a", 4), OPT.get("nw2a", 4) + OPT.get("nw2b", 8))]
    for i, j in enumerate(b3b):
        slot_of[j] = nfree[i]; dma(p, j, nfree[i])
    w2_early = [j for j in b3 if j[0] == "w2"] + b3b
    p("v_and_b32 v2, 63, v0")
    p("s_lshl_b32 s62, s52, 6")
    p("v_add_u32 v2, s62, v2")
    p("v_mul_u32_u24 v2, 7168, v2")
    p("s_lshl_b32 s62, s58, 10")
    p("s_or_b32 s62, s62, s95")
    p("v_add_u32 v42, s62, v2")
    def gate4():
        p(f"s_mov_b32 s82, {hex(WS_HN)}")
        p.vm("buffer_load_dword v43, v42, s[16:19], s82 offen sc1")
    poll(p, "G4", gate4, [43], 44, sleep0=OPT.get("sl_g40", 0), sleep=OPT.get("sl_g4", 2))
    p.stamp(12)
    b4 = [("w2", k) for k in range(len(w2_early), min(len(w2_early) + 14, 28))]
    b4ids = {}
    state = {"i": 0}
    def hook4(where, ks):
        if where == "end" and ks < len(w2_early):
            j = w2_early[ks]; tr(p, j, slot_of[j])
        if where == "top" and ks + PD >= 32:
            n = 2
            if state["i"] == 0: p("s_waitcnt lgkmcnt(0)")
            for _ in range(n):
                if state["i"] < len(b4):
                    j = b4[state["i"]]; slot_of[j] = state["i"]; b4ids[j] = dma(p, j, state["i"]); state["i"] += 1
    assert len(w2_early) <= 32 - PD - 2
    gemm_loop(p, "P4", 32, V_O4A, V_O4B, WS_HN, True, hook4)
    while state["i"] < len(b4):
        j = b4[state["i"]]; slot_of[j] = state["i"]; b4ids[j] = dma(p, j, state["i"]); state["i"] += 1
    p.stamp(13)
    gemm_reduce(p)
    for r4 in range(4):
        unpack(p, 96 + 4 * r4, 97 + 4 * r4, 16 + 2 * r4)
        unpack(p, 98 + 4 * r4, 99 + 4 * r4, 17 + 2 * r4)
    for e in range(16): p(f"v_add_f32 v{64+e}, v{64+e}, v{96+e}")
    p("s_mov_b32 s62, 0xc0135761")
    p("s_mov_b32 s63, 0xbdd2d3e8")
    p("v_mov_b32 v40, s62")
    for e in range(16): p(f"v_mul_f32 v{96+e}, v{64+e}, v{64+e}")
    for e in range(16): p(f"v_fma_f32 v{96+e}, v{96+e}, s63, v40")
    for e in range(16): p(f"v_mul_f32 v{96+e}, v{96+e}, v{64+e}")
    for e in range(16): p(f"v_exp_f32 v{96+e}, v{96+e}")
    for e in range(16): p(f"v_add_f32 v{96+e}, 1.0, v{96+e}")
    for e in range(16): p(f"v_rcp_f32 v{96+e}, v{96+e}")
    for e in range(16): p(f"v_mul_f32 v{64+e}, v{64+e}, v{96+e}")
    for r4 in range(4):
        p(f"v_cvt_pk_bf16_f32 v{96+2*r4}, v{64+4*r4}, v{65+4*r4}")
        p(f"v_cvt_pk_bf16_f32 v{97+2*r4}, v{66+4*r4}, v{67+4*r4}")
    sanitize(p, range(96, 104))
    for u in range(2):
        p(f"v_permlane32_swap_b32 v{96+4*u}, v{98+4*u}")
        p(f"v_permlane32_swap_b32 v{97+4*u}, v{99+4*u}")
    p(f"s_mov_b32 s82, {hex(WS_U)}"); p(f"s_mov_b32 s83, {hex(WS_U+14336)}")
    p.vm(f"buffer_store_dwordx4 v[96:99], v{V_UST}, s[16:19], s82 offen sc1")
    p.vm(f"buffer_store_dwordx4 v[100:103], v{V_UST}, s[16:19], s83 offen sc1")
    p.stamp(14)
    b5 = [("w2", k) for k in range(len(w2_early) + len(b4), 28)]
    if b4:
        p.vwait(b4ids[b4[-1]])
        for j in b4: tr(p, j, slot_of[j])
        p("s_waitcnt lgkmcnt(0)")
    idB5 = None
    for i, j in enumerate(b5):
        slot_of[j] = i; idB5 = dma(p, j, i)
    p("v_and_b32 v2, 31, v0")
    p("s_lshl_b32 s62, s59, 6")
    p("s_and_b32 s63, s52, 1")
    p("s_lshl_b32 s63, s63, 5")
    p("s_add_u32 s62, s62, s63")
    p("v_add_u32 v2, s62, v2")
    p("v_lshlrev_b32 v3, 1, v2")
    p("v_mul_u32_u24 v2, 896, v2")
    p("s_lshl_b32 s62, s60, 7")
    p("s_lshr_b32 s63, s52, 1")
    p("s_lshl_b32 s63, s63, 6")
    p("s_add_u32 s62, s62, s63")
    p("v_add_u32 v2, s62, v2")
    p("v_bfe_u32 v4, v0, 5, 1")
    p("v_lshl_add_u32 v44, v4, 4, v2")
    p.vm("buffer_load_ushort v45, v3, s[32:35], 0 offen")
    srd(p, 96, 46, SZ_SD)
    p("v_and_b32 v2, 63, v0")
    p("s_mul_i32 s62, s52, 56")
    p("v_add_u32 v3, s62, v2")
    p("v_mul_u32_u24 v3, 7168, v3")
    p("s_lshl_b32 s62, s60, 10")
    p("v_add_u32 v3, s62, v3")
    p("v_cmp_gt_u32 vcc, 56, v2")
    p("v_cndmask_b32 v42, v249, v3, vcc")
    def gate5():
        p(f"s_mov_b32 s82, {hex(WS_U)}")
        p.vm("buffer_load_dword v43, v42, s[16:19], s82 offen sc1")
    poll(p, "G5", gate5, [43], 46, sleep0=OPT.get("sl_g50", 0), sleep=OPT.get("sl_g5", 2))
    p.stamp(15)
    def hook5(where, ks):
        if where == "pre":
            p(f"s_mov_b32 s81, {hex(WS_H)}")
            p.vm("buffer_load_dwordx4 v[48:51], v44, s[16:19], s81 offen sc1")
            p.vm("buffer_load_dwordx4 v[52:55], v44, s[16:19], s81 offen offset:32 sc1")
            for j in b5: tr(p, j, slot_of[j])
            p("s_waitcnt lgkmcnt(0)")
    gemm_loop(p, "P5", 28, V_O5A, V_O5B, WS_U, False, hook5)
    p.stamp(16)
    gemm_reduce(p)
    def hloads():
        p(f"s_mov_b32 s81, {hex(WS_H)}")
        p.vm("buffer_load_dwordx4 v[48:51], v44, s[16:19], s81 offen sc1")
        p.vm("buffer_load_dwordx4 v[52:55], v44, s[16:19], s81 offen offset:32 sc1")
    p.vwait_all()
    check_sent(p, range(48, 56), 46)
    p("s_cbranch_vccz H_OK")
    poll(p, "PH", hloads, range(48, 56), 46)
    p.label("H_OK")
    for u in range(2):
        for r in range(4): p(f"v_permlane32_swap_b32 v{64+8*u+r}, v{64+8*u+4+r}")
    p("v_lshlrev_b32 v45, 16, v45")
    for u in range(2):
        for e in range(4): unpack(p, 96 + 8 * u + 2 * e, 97 + 8 * u + 2 * e, 48 + 4 * u + e)
    for e in range(16): p(f"v_add_f32 v{64+e}, v{64+e}, v45")
    for e in range(16): p(f"v_add_f32 v{64+e}, v{64+e}, v{96+e}")
    for u in range(2):
        for e in range(4): p(f"v_cvt_pk_bf16_f32 v{96+4*u+e}, v{64+8*u+2*e}, v{65+8*u+2*e}")
    p.vm("buffer_store_dwordx4 v[96:99], v44, s[96:99], 0 offen")
    p.vm("buffer_store_dwordx4 v[100:103], v44, s[96:99], 0 offen offset:32")
    p("s_branch FIN")
    p.label("CPATH")
    p.nvm, p.done = nvm0, done0
    srd(p, 20, 38, S * F * 2); srd(p, 24, 42, F * S * 2)
    id_q = q_loads(p)
    id_i2 = init_stores(p, [(V_HN, WS_HN, (0, 16)), (V_HN, WS_H, (0, 16))])
    touch_w1(p)
    touch_w2(p)
    p.vwait(id_i2)
    p("v_readfirstlane_b32 s3, v151")
    p("s_add_u32 s3, s3, 0x9e3779b9")
    p("s_barrier")
    publish(p, 4)
    q_stats(p)
    flagB_addr(p)
    p("s_sleep 40")
    poll_flags(p, "CB", 40, 41, 4, sleep=16)
    p3(p, True)
    p.label("FIN")
    if DIAG:
        p.vwait_all()
        p.stamp(17)
        p("v_and_b32 v1, 63, v0")
        p("s_lshl_b32 s62, s2, 2")
        p("s_add_u32 s62, s62, s52")
        p("s_lshl_b32 s62, s62, 7")
        p(f"s_add_u32 s62, s62, {hex(WS_STAMP)}")
        p("v_lshlrev_b32 v1, 2, v1")
        p("s_mov_b32 exec_lo, -1"); p("s_mov_b32 exec_hi, 0")
        p("buffer_store_dword v250, v1, s[16:19], s62 offen")
    p.label("END")
    p("s_endpgm")
    for q in p.stubs: p.extend(q)

def touch_w1(p):
    p("s_mul_i32 s62, s56, 9363")
    p("s_lshr_b32 s62, s62, 16")
    p("s_lshl_b32 s63, s54, 8")
    p("v_add_u32 v2, s63, v0")
    p("v_and_b32 v3, 2047, v2")
    p("v_mul_u32_u24 v3, 3584, v3")
    p("v_lshrrev_b32 v2, 11, v2")
    p("v_add_u32 v4, s62, v2")
    p("v_lshl_add_u32 v4, v4, 7, v3")
    p.vm("buffer_load_dword v246, v4, s[20:23], 0 offen")
    p("s_add_u32 s62, s62, 4")
    p("s_lshl_b32 s62, s62, 7")
    p("v_add_u32 v4, s62, v3")
    p("v_cmp_eq_u32 vcc, 0, v2")
    p("v_cndmask_b32 v4, v249, v4, vcc")
    p.vm("buffer_load_dword v247, v4, s[20:23], 0 offen")

def touch_w2(p):
    p("s_lshl_b32 s63, s54, 8")
    p("v_add_u32 v2, s63, v0")
    p("v_and_b32 v7, 2047, v2")
    p("v_lshlrev_b32 v7, 12, v7")
    p("v_lshrrev_b32 v2, 11, v2")
    p("s_lshl_b32 s63, s53, 2")
    p("v_add_u32 v2, s63, v2")
    p("v_lshl_add_u32 v7, v2, 7, v7")
    p.vm("buffer_load_dword v248, v7, s[24:27], 0 offen")

def weight_addr(p):
    p("v_and_b32 v1, 63, v0")
    p("v_lshrrev_b32 v2, 3, v1")
    p("v_and_b32 v3, 7, v1")
    p("v_bfe_u32 v4, v1, 4, 1")
    p("v_lshlrev_b32 v4, 2, v4")
    p("v_xor_b32 v3, v3, v4")
    p("v_lshlrev_b32 v3, 4, v3")
    p(f"s_mul_i32 s62, s52, {512*F*2}")
    p("s_lshl_b32 s63, s57, 7")
    p("s_add_u32 s62, s62, s63")
    p("s_or_b32 s62, s62, s95")
    p(f"v_mul_u32_u24 v4, {F*2}, v2")
    p("v_add_u32 v4, v4, v3")
    p(f"v_add_u32 v{V_W0}, s62, v4")
    p(f"v_add_u32 v{V_W1}, {8*F*2-1024}, v{V_W0}")
    p(f"s_mul_i32 s62, s52, {448*S*2}")
    p("s_lshl_b32 s63, s59, 7")
    p("s_add_u32 s62, s62, s63")
    p(f"v_lshlrev_b32 v4, 12, v2")
    p("v_add_u32 v4, v4, v3")
    p(f"v_add_u32 v{V_X0}, s62, v4")
    p(f"v_add_u32 v{V_X1}, {8*S*2-1024}, v{V_X0}")
    p("v_lshrrev_b32 v5, 5, v1")
    p("v_bfe_u32 v6, v1, 2, 2")
    p("v_lshlrev_b32 v7, 7, v6")
    p("v_lshl_add_u32 v7, v5, 10, v7")
    p("v_bfe_u32 v2, v1, 4, 1")
    p("v_bfe_u32 v3, v1, 1, 1")
    p("v_lshl_add_u32 v2, v2, 1, v3")
    p("v_lshrrev_b32 v6, 1, v6")
    p("v_lshlrev_b32 v6, 2, v6")
    p("v_xor_b32 v2, v2, v6")
    p("v_lshl_add_u32 v7, v2, 4, v7")
    p("v_and_b32 v3, 1, v1")
    p("v_lshl_add_u32 v7, v3, 3, v7")
    p("s_and_b32 s62, s52, 1")
    p("s_lshl_b32 s62, s62, 6")
    p("v_xor_b32 v7, s62, v7")
    p(f"v_add_u32 v{V_T0}, s{S_STGW}, v7")
    p(f"v_xor_b32 v{V_T1}, 64, v{V_T0}")
    p(f"v_add_u32 v{V_T0B}, {7*8192}, v{V_T0}")
    p(f"v_add_u32 v{V_T1B}, {7*8192}, v{V_T1}")
    p("v_and_b32 v4, 31, v1")
    p("v_mul_u32_u24 v6, 7168, v5")
    p("v_lshl_add_u32 v4, v4, 4, v6")
    p("s_lshr_b32 s63, s52, 1")
    p("s_lshl_b32 s63, s63, 9")
    p(f"s_mul_i32 s62, s52, {64*7168}")
    p("s_add_u32 s62, s62, s63")
    p("s_lshl_b32 s81, s58, 10")
    p("s_add_u32 s62, s62, s81")
    p("s_or_b32 s62, s62, s95")
    p(f"v_add_u32 v{V_O4A}, s62, v4")
    p(f"v_xor_b32 v{V_O4B}, 512, v{V_O4A}")
    p(f"s_mul_i32 s62, s52, {56*7168}")
    p("s_add_u32 s62, s62, s63")
    p("s_lshl_b32 s81, s60, 10")
    p("s_add_u32 s62, s62, s81")
    p(f"v_add_u32 v{V_O5A}, s62, v4")
    p(f"v_xor_b32 v{V_O5B}, 512, v{V_O5A}")

def u_store_addr(p):
    p("v_and_b32 v2, 31, v0")
    p("v_bfe_u32 v5, v0, 5, 1")
    p("v_mul_u32_u24 v5, 7168, v5")
    p("v_lshl_add_u32 v2, v2, 4, v5")
    p("s_lshl_b32 s62, s57, 3")
    p("s_and_b32 s63, s52, 1")
    p("s_lshl_b32 s63, s63, 2")
    p("s_add_u32 s62, s62, s63")
    p("s_mul_i32 s62, s62, 7168")
    p("s_lshl_b32 s63, s58, 10")
    p("s_add_u32 s62, s62, s63")
    p("s_lshr_b32 s63, s52, 1")
    p("s_lshl_b32 s63, s63, 9")
    p("s_add_u32 s62, s62, s63")
    p("s_or_b32 s62, s62, s95")
    p(f"v_add_u32 v{V_UST}, s62, v2")

HEADER = open(__file__.replace("gen_v2.py", "header.txt")).read()
def main(path):
    name = NAME + "_kernel"
    p = K(); main_kernel(p)
    out = [HEADER, f"; @launch grid=(256,1,1) block=(256,1,1) lds={LDS_BYTES}\n",
           '.amdgcn_target "amdgcn-amd-amdhsa--gfx950"\n.text\n',
           f".globl {name}\n.p2align 8\n.type {name},@function\n{name}:\n",
           render(pad_hazards(p.lines)),
           f""".section .rodata,"a"
.p2align 6
.amdhsa_kernel {name}
  .amdhsa_next_free_vgpr 512
  .amdhsa_next_free_sgpr 102
  .amdhsa_accum_offset 256
  .amdhsa_group_segment_fixed_size 0
  .amdhsa_kernarg_size 112
  .amdhsa_user_sgpr_count 2
  .amdhsa_user_sgpr_kernarg_segment_ptr 1
  .amdhsa_system_sgpr_workgroup_id_x 1
  .amdhsa_float_denorm_mode_32 3
.end_amdhsa_kernel
"""]
    open(path, "w").write("".join(out))

if __name__ == "__main__":
    DIAG = "--diag" in sys.argv
    for a in sys.argv[2:]:
        if "=" in a:
            k, v = a.split("="); OPT[k] = int(v)
    main(sys.argv[1])
```

```python
import sys
from asmlib import *

NAME = "sequential_preLN__ssm_conv_h3__mixer_token_mlp__prompt"
S, D, F = 2048, 448, 1792
WS_FLAG, WS_EPOCH = 0x0, 0x8000
WS_XR, WS_YT, WS_H, WS_HN, WS_U, WS_STAMP = 0x100000, 0x300000, 0x500000, 0x700000, 0x900000, 0xC00000
WS_SIZE = 0x1000000
SZ_SD = S * D * 2
BIG = 0x80000000
POLL_CAP = 40000
LX, PL = 0, 1568
LK, CP = 12544, 4160
LE = 12544
LST_Q, LST_H = 46080, 46336
STG = 49152
LDS_BYTES = 163840
DIAG = False
OPT = {}

class K(Prog):
    def __init__(self):
        super().__init__()
        self.nvm = 0
        self.done = 0
        self.nst = 0
        self.stubs = []
        self.uid = 0
    def vm(self, text):
        self(text); self.nvm += 1
        return self.nvm - 1
    def vwait(self, idx, extra=""):
        if idx < self.done and not extra: return
        n = self.nvm - 1 - idx
        n = min(n, 62)
        self(f"s_waitcnt vmcnt({n}) {extra}".strip())
        self.done = max(self.done, self.nvm - n)
    def vwait_all(self, extra=""):
        self(f"s_waitcnt vmcnt(0) {extra}".strip()); self.done = self.nvm
    def lab(self, base):
        self.uid += 1
        return f"{base}_{self.uid}"
    def stamp(self, i):
        if DIAG:
            self("s_memrealtime s[84:85]")
            self("s_waitcnt lgkmcnt(0)")
            self(f"v_writelane_b32 v250, s84, {i}")

def srd(p, dst, ptr, size):
    p(f"s_mov_b32 s{dst}, s{ptr}")
    p(f"s_and_b32 s{dst+1}, s{ptr+1}, 0xffff")
    p(f"s_mov_b32 s{dst+2}, {hex(size)}")
    p(f"s_mov_b32 s{dst+3}, 0x20000")

def unpack(p, lo, hi, src):
    p(f"v_lshlrev_b32 v{lo}, 16, v{src}")
    p(f"v_and_b32 v{hi}, 0xffff0000, v{src}")

def sanitize(p, regs):
    for r in regs: p(f"v_min_u32 v{r}, -2, v{r}")

def check_sent(p, regs, tmp):
    regs = list(regs)
    p(f"v_max3_u32 v{tmp}, v{regs[0]}, v{regs[1]}, v{regs[2]}")
    i = 3
    while i + 1 < len(regs):
        p(f"v_max3_u32 v{tmp}, v{tmp}, v{regs[i]}, v{regs[i+1]}"); i += 2
    if i < len(regs): p(f"v_max_u32 v{tmp}, v{tmp}, v{regs[i]}")
    p(f"v_cmp_eq_u32 vcc, -1, v{tmp}")

def poll(p, name, loads, regs, tmp, sleep0=0, sleep=2, nyoung=0):
    L = p.lab(name); Ld = L + "_ok"
    if sleep0: p(f"s_sleep {sleep0}")
    p("s_mov_b32 s80, 0")
    p.label(L)
    loads()
    p.vwait_all()
    if len(regs) >= 3: check_sent(p, regs, tmp)
    else: p(f"v_cmp_eq_u32 vcc, -1, v{regs[0]}")
    p(f"s_cbranch_vccz {Ld}")
    p("s_add_u32 s80, s80, 1")
    p(f"s_cmp_gt_u32 s80, {POLL_CAP}")
    p(f"s_cbranch_scc1 {Ld}")
    p(f"s_sleep {sleep}")
    p(f"s_branch {L}")
    p.label(Ld)

def poll_flags(p, name, vaddr, vdst, off, first_issued=None, sleep=2):
    L = p.lab(name); Ld = L + "_ok"; Lc = L + "_chk"
    p("s_mov_b32 s80, 0")
    if first_issued is not None:
        p.vwait(first_issued)
        p(f"s_branch {Lc}")
    p.label(L)
    if first_issued is not None:
        p(f"buffer_load_dword v{vdst}, v{vaddr}, s[16:19], 0 offen offset:{off} sc1")
        p("s_waitcnt vmcnt(0)")
    else:
        p.vm(f"buffer_load_dword v{vdst}, v{vaddr}, s[16:19], 0 offen offset:{off} sc1")
        p.vwait_all()
    p.label(Lc)
    p(f"v_cmp_le_i32 vcc, 0, v{vaddr}")
    p(f"v_mov_b32 v{vdst+1}, s3")
    p(f"v_cndmask_b32 v{vdst}, v{vdst+1}, v{vdst}, vcc")
    p(f"v_cmp_ne_u32 vcc, s3, v{vdst}")
    p(f"s_cbranch_vccz {Ld}")
    p("s_add_u32 s80, s80, 1")
    p(f"s_cmp_gt_u32 s80, {POLL_CAP}")
    p(f"s_cbranch_scc1 {Ld}")
    p(f"s_sleep {sleep}")
    p(f"s_branch {L}")
    p.label(Ld)

V_W0, V_W1, V_X0, V_X1, V_T0, V_T1, V_T0B, V_T1B = 24, 25, 26, 27, 28, 29, 30, 31
V_O4A, V_O4B, V_O5A, V_O5B, V_Y, V_HROW, V_HN, V_UST = 32, 33, 34, 35, 36, 37, 38, 39
S_STGW = 61
def dma(p, job, slot):
    mat, k = job
    RS = F * 2 if mat == "w1" else S * 2
    sreg = 82 + (p.nvm & 1)
    p(f"s_add_u32 m0, s{S_STGW}, {slot*8192}")
    p(f"s_mov_b32 s{sreg}, {k*16*RS}")
    v0_, v1_, sr_ = (V_W0, V_W1, "s[20:23]") if mat == "w1" else (V_X0, V_X1, "s[24:27]")
    p.vm(f"buffer_load_dwordx4 v{v0_}, {sr_}, s{sreg} offen lds")
    return p.vm(f"buffer_load_dwordx4 v{v1_}, {sr_}, s{sreg} offen offset:1024 lds")
def tr(p, job, slot):
    mat, k = job
    for tau in range(2):
        va = (V_T0, V_T1)[tau] if slot < 7 else (V_T0B, V_T1B)[tau]
        for u in range(2):
            p(f"ds_read_b64_tr_b16 {ar(8*k+4*tau+2*u,2)}, v{va} offset:{(slot%7)*8192+512*u}")

def row_stats(p, base, lds, finish):
    for r in range(8): p(f"v_permlane32_swap_b32 v{base+2*r}, v{base+2*r+1}")
    for r in range(8): p(f"v_add_f32 v{base+2*r}, v{base+2*r}, v{base+2*r+1}")
    for k in range(4): p(f"v_permlane16_swap_b32 v{base+4*k}, v{base+4*k+2}")
    for k in range(4): p(f"v_add_f32 v{base+4*k}, v{base+4*k}, v{base+4*k+2}")
    for sh in (8, 4, 2, 1):
        for k in range(4): p(f"v_add_f32_dpp v{base+4*k}, v{base+4*k}, v{base+4*k} row_ror:{sh} row_mask:0xf bank_mask:0xf")
    p("v_bfe_u32 v4, v0, 4, 1")
    p("v_lshlrev_b32 v4, 5, v4")
    p("v_bfe_u32 v5, v0, 5, 1")
    p("v_lshl_add_u32 v4, v5, 4, v4")
    p("v_lshrrev_b32 v5, 6, v0")
    p("v_lshl_add_u32 v4, v5, 2, v4")
    p("s_mov_b32 exec_lo, 0x00010001")
    p("s_mov_b32 exec_hi, 0x00010001")
    for k in range(4): p(f"ds_write_b32 v4, v{base+4*k} offset:{lds+64*k}")
    p("s_mov_b64 exec, -1")
    p("v_and_b32 v5, 7, v0")
    p("v_lshlrev_b32 v5, 5, v5")
    p("s_waitcnt lgkmcnt(0)")
    p("s_barrier")
    p(f"ds_read_b128 {vr(base,4)}, v5 offset:{lds}")
    p(f"ds_read_b128 {vr(base+4,4)}, v5 offset:{lds+16}")
    p("s_mov_b32 s62, 0x3b124925")
    p("s_mov_b32 s63, 0x3727c5ac")
    p("s_waitcnt lgkmcnt(0)")
    b = base
    p(f"v_add_f32 v{b}, v{b}, v{b+1}"); p(f"v_add_f32 v{b+2}, v{b+2}, v{b+3}")
    p(f"v_add_f32 v{b+4}, v{b+4}, v{b+5}"); p(f"v_add_f32 v{b+6}, v{b+6}, v{b+7}")
    p(f"v_add_f32 v{b}, v{b}, v{b+2}"); p(f"v_add_f32 v{b+4}, v{b+4}, v{b+6}")
    p(f"v_mul_f32 v{b}, s62, v{b}")
    p(f"v_mul_f32 v{b+4}, s62, v{b+4}")
    p(f"v_fma_f32 v{b+4}, -v{b}, v{b}, v{b+4}")
    p(f"v_max_f32 v{b+4}, 0, v{b+4}")
    p(f"v_add_f32 v{b+5}, s63, v{b+4}")
    p(f"v_rsq_f32 v{b+5}, v{b+5}")
    finish(b)
    for r in range(8):
        p(f"v_readlane_b32 s{64+2*r}, v{b}, {r}")
        p(f"v_readlane_b32 s{65+2*r}, v{b+5}, {r}")

def q_loads(p):
    srd(p, 68, 4, SZ_SD)
    p("s_mul_i32 s62, s55, 7168")
    p("v_lshlrev_b32 v2, 2, v0")
    p("v_add_u32 v2, s62, v2")
    p("v_cmp_gt_u32 vcc, 224, v0")
    p(f"v_cndmask_b32 v{V_HROW}, v249, v2, vcc")
    p("v_lshlrev_b32 v2, 5, v0")
    p("v_add_u32 v2, s62, v2")
    p(f"v_cndmask_b32 v{V_HN}, v249, v2, vcc")
    p("s_lshl_b32 s63, s55, 4")
    p("v_lshlrev_b32 v2, 13, v0")
    p("v_add_u32 v2, s63, v2")
    p(f"v_cndmask_b32 v{V_Y}, v249, v2, vcc")
    p("s_movk_i32 s62, 4480")
    last = None
    for r in range(8):
        so, off = ("0", 896 * r) if r < 5 else ("s62", 896 * (r - 5))
        last = p.vm(f"buffer_load_dword v{8+r}, v{V_HROW}, s[68:71], {so} offen offset:{off}")
    return last

def q_stats(p):
    p("s_mov_b32 s62, 0x3f803f80")
    for r in range(8):
        p(f"v_dot2_f32_bf16 v{208+2*r}, v{8+r}, s62, 0")
        p(f"v_dot2_f32_bf16 v{209+2*r}, v{8+r}, v{8+r}, 0")
    p("s_nop 2")
    row_stats(p, 208, LST_Q, lambda b: p("s_nop 0"))

def init_stores(p, regions):
    ids = []
    for j in range(4): p(f"v_mov_b32 v{4+j}, -1")
    for (v, reg, offs) in regions:
        for off in offs:
            so, io = (reg + off, 0) if off >= 4096 else (reg, off)
            sreg = 82 + (p.nvm & 1)
            p(f"s_mov_b32 s{sreg}, {hex(so)}")
            ids.append(p.vm(f"buffer_store_dwordx4 v[4:7], v{v}, s[16:19], s{sreg} offen offset:{io} sc1"))
    return ids[-1]

def publish(p, off):
    L = p.lab("PUB")
    p("s_cmp_lg_u32 s52, 0")
    p(f"s_cbranch_scc1 {L}")
    p("s_lshl_b32 s62, s2, 7")
    p("v_mov_b32 v2, s3")
    p("s_mov_b64 exec, 1")
    p.vm_noacct = True
    p(f"buffer_store_dword v2, off, s[16:19], s62 offset:{off} sc1")
    p("s_mov_b64 exec, -1")
    p.label(L)
    p.extra_w0 = True

def p3(p, cpath):
    def loads():
        p(f"s_mov_b32 s82, {hex(WS_YT)}"); p(f"s_mov_b32 s83, {hex(WS_YT+4096)}")
        p.vm(f"buffer_load_dwordx4 v[192:195], v{V_Y}, s[16:19], s82 offen sc1")
        p.vm(f"buffer_load_dwordx4 v[196:199], v{V_Y}, s[16:19], s83 offen sc1")
    for r in range(8):
        unpack(p, 208 + 2 * r, 209 + 2 * r, 8 + r)
        for ch in range(2):
            p(f"v_subrev_f32 v{46+2*r+ch}, s{64+2*r}, v{208+2*r+ch}")
            p(f"v_mul_f32 v{46+2*r+ch}, s{65+2*r}, v{46+2*r+ch}")
    poll(p, "PY", loads, range(192, 200), 200, sleep0=OPT.get("sl_y0", 0), sleep=OPT.get("sl_y", 4))
    p.stamp(10)
    for ch in range(2):
        for e in range(4):
            unpack(p, 224 + 2 * (2 * e) + ch, 224 + 2 * (2 * e + 1) + ch, 192 + 4 * ch + e)
    for r in range(8):
        for ch in range(2):
            p(f"v_fma_f32 v{208+2*r+ch}, v{46+2*r+ch}, v{224+2*r+ch}, v{208+2*r+ch}")
        p(f"v_cvt_pk_bf16_f32 v{8+r}, v{208+2*r}, v{209+2*r}")
    sanitize(p, range(8, 16))
    p(f"s_mov_b32 s82, {hex(WS_H)}"); p(f"s_mov_b32 s83, {hex(WS_H+4480)}")
    for r in range(8):
        so, off = ("s82", 896 * r) if r < 5 else ("s83", 896 * (r - 5))
        p.vm(f"buffer_store_dword v{8+r}, v{V_HROW}, s[16:19], {so} offen offset:{off} sc1")
    for r in range(8):
        unpack(p, 208 + 2 * r, 209 + 2 * r, 8 + r)
        p(f"v_add_f32 v{224+2*r}, v{208+2*r}, v{209+2*r}")
        p(f"v_mul_f32 v{225+2*r}, v{208+2*r}, v{208+2*r}")
        p(f"v_fmac_f32 v{225+2*r}, v{209+2*r}, v{209+2*r}")
    def fin(b):
        p("s_nop 0")
        p(f"v_mul_f32 v{b+6}, v{b+5}, v{b+5}")
        p(f"v_mul_f32 v{b+6}, v{b+6}, v{b+4}")
        p(f"v_add_f32 v{b+6}, s63, v{b+6}")
        p(f"v_rsq_f32 v{b+6}, v{b+6}")
        p("s_nop 0")
        p(f"v_mul_f32 v{b+5}, v{b+5}, v{b+6}")
    row_stats(p, 224, LST_H, fin)
    for r in range(8):
        for ch in range(2):
            p(f"v_subrev_f32 v{208+2*r+ch}, s{64+2*r}, v{208+2*r+ch}")
            p(f"v_mul_f32 v{208+2*r+ch}, s{65+2*r}, v{208+2*r+ch}")
    for ch in range(2):
        for e in range(4):
            p(f"v_cvt_pk_bf16_f32 v{192+4*ch+e}, v{208+2*(2*e)+ch}, v{208+2*(2*e+1)+ch}")
    sanitize(p, range(192, 200))
    p(f"s_mov_b32 s82, {hex(WS_HN)}")
    p.vm(f"buffer_store_dwordx4 v[192:195], v{V_HN}, s[16:19], s82 offen sc1")
    p.vm(f"buffer_store_dwordx4 v[196:199], v{V_HN}, s[16:19], s82 offen offset:16 sc1")
    p.stamp(11)

def flagB_addr(p):
    p("v_lshlrev_b32 v40, 7, v0")

def epoch_update(p):
    L = p.lab("EPU")
    p("s_cmp_lg_u32 s2, 0")
    p(f"s_cbranch_scc1 {L}")
    p("s_cmp_lg_u32 s52, 0")
    p(f"s_cbranch_scc1 {L}")
    p(f"s_mov_b32 s62, {hex(WS_EPOCH)}")
    p("v_mov_b32 v2, s3")
    p("s_mov_b64 exec, 1")
    p("buffer_store_dword v2, off, s[16:19], s62 sc1")
    p("s_mov_b64 exec, -1")
    p.label(L)

ACC = lambda b: 64 + 16 * b
OR = lambda s: 128 + 8 * s
NS, PD = 8, 7
def gemm_loop(p, tag, N, va, vb, region, t_is_a, hook):
    ids = {}
    def issue(ks):
        s = ks % NS
        sreg = 82 + (ks & 1)
        p(f"s_mov_b32 s{sreg}, {hex(region + ks*14336)}")
        p.vm(f"buffer_load_dwordx4 {vr(OR(s),4)}, v{va}, s[16:19], s{sreg} offen sc1")
        ids[ks] = p.vm(f"buffer_load_dwordx4 {vr(OR(s)+4,4)}, v{vb}, s[16:19], s{sreg} offen sc1")
    def check(ks):
        s = ks % NS; b = OR(s)
        p(f"v_max3_u32 v40, v{b}, v{b+1}, v{b+2}")
        p(f"v_max3_u32 v41, v{b+3}, v{b+4}, v{b+5}")
        p(f"v_max3_u32 v40, v40, v{b+6}, v{b+7}")
        p("v_max_u32 v40, v40, v41")
        p("v_cmp_eq_u32 vcc, -1, v40")
        St = f"{tag}_RETRY{ks}"; Bk = f"{tag}_BACK{ks}"
        p(f"s_cbranch_vccnz {St}")
        p.label(Bk)
        q = Prog()
        q.label(St)
        q("s_mov_b32 s80, 0")
        q.label(St + "_L")
        q("s_add_u32 s80, s80, 1")
        q(f"s_cmp_gt_u32 s80, {POLL_CAP}")
        q(f"s_cbranch_scc1 {Bk}")
        q(f"s_mov_b32 s81, {hex(region + ks*14336)}")
        q("s_sleep 2")
        q(f"buffer_load_dwordx4 {vr(b,4)}, v{va}, s[16:19], s81 offen sc1")
        q(f"buffer_load_dwordx4 {vr(b+4,4)}, v{vb}, s[16:19], s81 offen sc1")
        q("s_waitcnt vmcnt(0)")
        q(f"v_max3_u32 v40, v{b}, v{b+1}, v{b+2}")
        q(f"v_max3_u32 v41, v{b+3}, v{b+4}, v{b+5}")
        q(f"v_max3_u32 v40, v40, v{b+6}, v{b+7}")
        q("v_max_u32 v40, v40, v41")
        q("v_cmp_eq_u32 vcc, -1, v40")
        q(f"s_cbranch_vccnz {St}_L")
        q(f"s_branch {Bk}")
        p.stubs.append(q)
    def mfma(ks, tau, om):
        s = ks % NS; acc = ACC(tau + 2 * om)
        T = ar(8 * ks + 4 * tau, 4); O = vr(OR(s) + 4 * om, 4)
        c = vr(acc, 16) if ks > 0 else "0"
        if t_is_a: p(f"v_mfma_f32_32x32x16_bf16 {vr(acc,16)}, {T}, {O}, {c}")
        else: p(f"v_mfma_f32_32x32x16_bf16 {vr(acc,16)}, {O}, {T}, {c}")
    for ks in range(PD): issue(ks)
    hook("pre", -1)
    p.vwait(ids[0]); check(0)
    for ks in range(N):
        if ks + PD < N: issue(ks + PD)
        hook("top", ks)
        mfma(ks, 0, 0); mfma(ks, 1, 0)
        if ks + 1 < N:
            p.vwait(ids[ks + 1])
        mfma(ks, 0, 1)
        if ks + 1 < N:
            mark = len(p.lines)
            check(ks + 1)
            chk = p.lines[mark:]; del p.lines[mark:]
            p.lines += chk[:3]
            mfma(ks, 1, 1)
            p.lines += chk[3:]
        else:
            mfma(ks, 1, 1)
        hook("end", ks)

def gemm_reduce(p):
    p("v_and_b32 v1, 63, v0")
    p("v_lshlrev_b32 v1, 4, v1")
    for m in range(1, 4):
        p(f"s_xor_b32 s62, s52, {m}")
        p("s_mul_i32 s62, s62, 12288")
        p(f"v_add_u32 v{1+m}, s62, v1")
    p("s_mul_i32 s62, s52, 12288")
    p("v_add_u32 v1, s62, v1")
    p("s_barrier")
    for m in range(1, 4):
        for j in range(4):
            p(f"ds_write_b128 v{1+m}, {vr(ACC(m)+4*j,4)} offset:{(m-1)*4096+1024*j}")
    p("s_waitcnt lgkmcnt(0)")
    p("s_barrier")
    for m in range(1, 4):
        for j in range(4):
            p(f"ds_read_b128 {vr(ACC(m)+4*j,4)}, v1 offset:{(m-1)*4096+1024*j}")
    p("s_waitcnt lgkmcnt(4)")
    for j in range(16): p(f"v_add_f32 v{ACC(1)+j}, v{ACC(1)+j}, v{ACC(2)+j}")
    p("s_waitcnt lgkmcnt(0)")
    for j in range(16): p(f"v_add_f32 v{ACC(0)+j}, v{ACC(0)+j}, v{ACC(3)+j}")
    for j in range(16): p(f"v_add_f32 v{ACC(0)+j}, v{ACC(0)+j}, v{ACC(1)+j}")

def main_kernel(p):
    p("s_cmp_ge_u32 s2, 256")
    p("s_cbranch_scc1 END")
    p("s_load_dwordx8 s[4:11], s[0:1], 0")
    p("s_load_dwordx4 s[12:15], s[0:1], 32")
    p("s_load_dwordx16 s[36:51], s[0:1], 48")
    if DIAG: p("v_mov_b32 v250, 0")
    p(f"v_mov_b32 v249, {hex(BIG)}")
    p.stamp(0)
    p("v_lshrrev_b32 v1, 6, v0")
    p("s_and_b32 s53, s2, 7")
    p("s_lshr_b32 s54, s2, 3")
    p("v_readfirstlane_b32 s52, v1")
    p("s_lshl_b32 s55, s53, 5")
    p("s_add_u32 s55, s55, s54")
    p("s_mul_i32 s56, s53, 24")
    p("s_min_u32 s57, s53, 4")
    p("s_add_u32 s56, s56, s57")
    p("s_add_u32 s62, s56, s54")
    p("s_mul_i32 s57, s62, 9363")
    p("s_lshr_b32 s57, s57, 16")
    p("s_mul_i32 s58, s57, 7")
    p("s_sub_u32 s58, s62, s58")
    p("s_cmp_lt_u32 s53, 4")
    p("s_cselect_b32 s62, 25, 24")
    p("s_cmp_lt_u32 s54, s62")
    p(f"s_cselect_b32 s95, 0, {hex(BIG)}")
    p("s_mul_i32 s59, s54, 9363")
    p("s_lshr_b32 s59, s59, 16")
    p("s_mul_i32 s60, s59, 7")
    p("s_sub_u32 s60, s54, s60")
    p("s_lshl_b32 s62, s53, 2")
    p("s_add_u32 s59, s62, s59")
    p("s_lshl_b32 s61, s52, 11")
    p(f"s_add_u32 s{S_STGW}, s{S_STGW}, {STG}")
    p("s_lshr_b32 s86, s2, 5")
    p("s_and_b32 s87, s2, 31")
    p("v_and_b32 v3, 7, v0")
    p("v_lshrrev_b32 v4, 3, v0")
    p("s_mul_i32 s62, s87, 57344")
    p("s_lshl_b32 s63, s86, 7")
    p("s_add_u32 s62, s62, s63")
    p("v_mul_u32_u24 v128, 7168, v3")
    p("v_lshl_add_u32 v128, v4, 2, v128")
    p("v_add_u32 v128, s62, v128")
    p("v_subrev_u32 v129, 2688, v128")
    p("v_cmp_gt_u32 vcc, 2688, v128")
    p("v_cndmask_b32 v129, v129, v249, vcc")
    p("s_lshl_b32 s62, s86, 9")
    p("v_lshl_add_u32 v149, v4, 4, s62")
    p("s_lshl_b32 s62, s86, 18")
    p("s_lshl_b32 s63, s87, 7")
    p("s_add_u32 s62, s62, s63")
    p("v_lshlrev_b32 v150, 13, v4")
    p("v_lshl_add_u32 v150, v3, 4, v150")
    p("v_add_u32 v150, s62, v150")
    p("s_waitcnt lgkmcnt(0)")
    p.stamp(1)
    srd(p, 16, 50, WS_SIZE)
    p(f"s_mov_b32 s62, {hex(WS_EPOCH)}")
    id_ep = p.vm("buffer_load_dword v151, off, s[16:19], s62 sc1")
    p("s_cmp_ge_u32 s2, 224")
    p("s_cbranch_scc1 CPATH")
    nvm0, done0 = p.nvm, p.done
    id_xi = init_stores(p, [(150, WS_XR, (0, 4096))])
    srd(p, 28, 6, SZ_SD); srd(p, 32, 8, SZ_SD); srd(p, 64, 10, D * 8)
    p("s_movk_i32 s62, 4480")
    id_sk = p.vm("buffer_load_dwordx4 v[152:155], v149, s[64:67], 0 offen")
    for j in range(3): p.vm(f"buffer_load_dword v{130+j}, v129, s[28:31], 0 offen offset:{896*j}")
    for r in range(8):
        so, off = ("0", 896 * r) if r < 5 else ("s62", 896 * (r - 5))
        id_k = p.vm(f"buffer_load_dword v{133+r}, v128, s[28:31], {so} offen offset:{off}")
    for r in range(8):
        so, off = ("0", 896 * r) if r < 5 else ("s62", 896 * (r - 5))
        id_v = p.vm(f"buffer_load_dword v{141+r}, v128, s[32:35], {so} offen offset:{off}")
    id_q = q_loads(p)
    srd(p, 72, 12, SZ_SD)
    p("v_lshrrev_b32 v2, 7, v0")
    p("v_and_b32 v3, 127, v0")
    p("s_lshl_b32 s62, s2, 13")
    p("v_lshlrev_b32 v4, 12, v2")
    p("v_add_u32 v4, s62, v4")
    p("v_lshl_add_u32 v108, v3, 4, v4")
    p("v_subrev_u32 v88, 64, v108")
    p("v_cmp_gt_u32 vcc, 4, v3")
    p("v_cndmask_b32 v88, v88, v249, vcc")
    p("v_add_u32 v91, 4032, v108")
    p("v_cndmask_b32 v91, v249, v91, vcc")
    p("v_subrev_u32 v89, 48, v108")
    p("v_cmp_gt_u32 vcc, 3, v3")
    p("v_cndmask_b32 v89, v89, v249, vcc")
    p("v_add_u32 v92, 4048, v108")
    p("v_cndmask_b32 v92, v249, v92, vcc")
    p("v_add_u32 v90, 1984, v108")
    p.vm("buffer_load_dwordx4 v[64:67], v88, s[72:75], 0 offen")
    p.vm("buffer_load_dwordx2 v[68:69], v89, s[72:75], 0 offen")
    p.vm("buffer_load_dwordx4 v[72:75], v90, s[72:75], 0 offen")
    p.vm("buffer_load_dwordx2 v[76:77], v90, s[72:75], 0 offen offset:16")
    p.vm("buffer_load_dwordx4 v[80:83], v91, s[72:75], 0 offen")
    id_f = p.vm("buffer_load_dwordx2 v[84:85], v92, s[72:75], 0 offen")
    p("s_lshl_b32 s63, s2, 2")
    p("s_load_dword s88, s[14:15], s63")
    srd(p, 20, 38, S * F * 2); srd(p, 24, 42, F * S * 2)
    touch_w1(p)
    weight_addr(p)
    p.vwait(id_xi)
    p("v_readfirstlane_b32 s3, v151")
    p("s_add_u32 s3, s3, 0x9e3779b9")
    p("s_barrier")
    publish(p, 0)
    nb1 = OPT.get("nb1", 14)
    idB1 = None
    for k in range(nb1): idB1 = dma(p, ("w1", k), k)
    p.vwait(id_sk)
    p("v_lshlrev_b32 v156, 16, v152"); p("v_lshlrev_b32 v157, 16, v154")
    p("v_and_b32 v158, 0xffff0000, v152"); p("v_and_b32 v159, 0xffff0000, v154")
    p("v_lshlrev_b32 v160, 16, v153"); p("v_lshlrev_b32 v161, 16, v155")
    p("v_and_b32 v162, 0xffff0000, v153"); p("v_and_b32 v163, 0xffff0000, v155")
    p.vwait(id_k)
    for r in range(11): unpack(p, 164 + 2 * r, 165 + 2 * r, 130 + r)
    for r in range(8):
        x = 202 + 2 * r
        Kp = lambda i: vr(164 + 2 * i, 2)
        p(f"v_pk_mul_f32 {vr(x,2)}, {Kp(r+3)}, v[156:157]")
        p(f"v_pk_fma_f32 {vr(x,2)}, {Kp(r+2)}, v[158:159], {vr(x,2)}")
        p(f"v_pk_fma_f32 {vr(x,2)}, {Kp(r+1)}, v[160:161], {vr(x,2)}")
        p(f"v_pk_fma_f32 {vr(x,2)}, {Kp(r)}, v[162:163], {vr(x,2)}")
    p.vwait(id_v)
    p.stamp(2)
    for r in range(8): unpack(p, 186 + 2 * r, 187 + 2 * r, 141 + r)
    for r in range(8): p(f"v_pk_mul_f32 {vr(202+2*r,2)}, {vr(202+2*r,2)}, {vr(186+2*r,2)}")
    for ch in range(2):
        for e in range(4):
            p(f"v_cvt_pk_bf16_f32 v{220+4*ch+e}, v{202+2*(7-2*e)+ch}, v{202+2*(6-2*e)+ch}")
    sanitize(p, range(220, 228))
    p(f"s_mov_b32 s82, {hex(WS_XR)}"); p(f"s_mov_b32 s83, {hex(WS_XR+4096)}")
    p.vm("buffer_store_dwordx4 v[220:223], v150, s[16:19], s82 offen sc1")
    p.vm("buffer_store_dwordx4 v[224:227], v150, s[16:19], s83 offen sc1")
    p.stamp(3)
    p("v_and_b32 v2, 63, v0")
    p("s_lshl_b32 s62, s86, 12")
    p("v_lshl_add_u32 v42, v2, 7, s62")
    p("v_cmp_gt_u32 vcc, 32, v2")
    p("v_cndmask_b32 v42, v249, v42, vcc")
    id_fa = p.vm("buffer_load_dword v43, v42, s[16:19], 0 offen sc1")
    p("v_lshrrev_b32 v2, 7, v0")
    p("v_and_b32 v3, 127, v0")
    p("v_lshrrev_b32 v12+0, 5, v3".replace("v12+0", "v93"))
    p("v_and_b32 v94, 31, v3")
    p("v_mul_u32_u24 v95, 6272, v2")
    p(f"v_mul_u32_u24 v93, {PL}, v93")
    p("v_add_u32 v93, v93, v95")
    p("v_lshl_add_u32 v93, v94, 4, v93")
    for j in range(4): p(f"v_mov_b32 v{96+j}, 0")
    p("ds_write_b128 v93, v[96:99]")
    p("v_and_b32 v109, 3, v3")
    p(f"v_mul_u32_u24 v109, {PL}, v109")
    p("v_add_u32 v109, v109, v95")
    p("v_lshrrev_b32 v94, 2, v3")
    p("v_lshl_add_u32 v109, v94, 4, v109")
    p(f"v_mul_u32_u24 v110, {4*CP}, v2")
    p("v_lshl_add_u32 v110, v3, 4, v110")
    p(f"v_add_u32 v110, {LK}, v110")
    p.vwait(id_f)
    for r, w in enumerate((64, 72, 80)):
        if r == 2:
            p("v_cmp_gt_u32 vcc, 4, v3")
            p("s_and_saveexec_b64 s[62:63], vcc")
            p("s_cbranch_execz SKIP3")
        for i in range(4): p(f"v_alignbit_b32 v{112+i}, v{w+i+1}, v{w+i}, 16")
        for i in range(4): p(f"v_mov_b32 v{116+i}, v{w+1+i}")
        for i in range(4): p(f"v_alignbit_b32 v{120+i}, v{w+i+2}, v{w+i+1}, 16")
        p(f"ds_write_b128 v110, v[112:115] offset:{0*CP + 2048*r}")
        p(f"ds_write_b128 v110, v[116:119] offset:{1*CP + 2048*r}")
        p(f"ds_write_b128 v110, v[120:123] offset:{2*CP + 2048*r}")
        p(f"ds_write_b128 v110, {vr(w+2,4)} offset:{3*CP + 2048*r}")
        if r == 2:
            p.label("SKIP3")
            p("s_mov_b64 exec, s[62:63]")
        p("s_nop 1")
    p.vwait(id_q)
    q_stats(p)
    p.vwait(idB1)
    for k in range(nb1): tr(p, ("w1", k), k)
    poll_flags(p, "CA", 42, 43, 0, first_issued=id_fa)
    p.stamp(4)
    def xloads():
        p(f"s_mov_b32 s82, {hex(WS_XR)}")
        p.vm("buffer_load_dwordx4 v[100:103], v108, s[16:19], s82 offen sc1")
        p.vm("buffer_load_dwordx4 v[104:107], v108, s[16:19], s82 offen offset:2048 sc1")
    poll(p, "PX", xloads, range(100, 108), 111, sleep0=OPT.get("sl_x0", 0), sleep=OPT.get("sl_x", 2))
    p.stamp(5)
    p("ds_write_b128 v109, v[100:103] offset:512")
    p("ds_write_b128 v109, v[104:107] offset:1024")
    u_store_addr(p)
    p("v_lshlrev_b32 v2, 5, v0")
    p("s_lshl_b32 s62, s2, 13")
    p("v_add_u32 v44, s62, v2")
    id_i2 = init_stores(p, [(44, WS_YT, (0, 16)), (V_HN, WS_HN, (0, 16)), (V_HN, WS_H, (0, 16)), (V_UST, WS_U, (0, 14336))])
    p("s_lshr_b32 s89, s52, 1")
    p("s_and_b32 s90, s52, 1")
    p("v_and_b32 v3, 31, v0")
    p("v_bfe_u32 v4, v0, 5, 1")
    p("v_and_b32 v5, 3, v3")
    p(f"v_mul_u32_u24 v5, {CP}, v5")
    p("v_lshrrev_b32 v6, 2, v3")
    p("v_lshl_add_u32 v5, v6, 3, v5")
    p("v_lshl_add_u32 v5, v4, 4, v5")
    p(f"s_mul_i32 s62, s89, {4*CP}")
    p("s_lshl_b32 s63, s90, 5")
    p("s_add_u32 s62, s62, s63")
    p(f"s_add_u32 s62, s62, {LK}")
    p("v_add_u32 v45, s62, v5")
    p("s_lshl_b32 s62, s90, 1")
    p("s_sub_u32 s62, 3, s62")
    p("v_sub_u32 v6, s62, v4")
    p(f"v_mul_u32_u24 v6, {PL}, v6")
    p("v_lshl_add_u32 v6, v3, 4, v6")
    p("s_mul_i32 s91, s89, 6272")
    p("v_add_u32 v46, s91, v6")
    flagB_addr(p)
    p("s_waitcnt lgkmcnt(0)")
    p("s_barrier")
    p.stamp(6)
    A0, A1 = 64, 80
    NSc = 4
    RA = lambda s: 100 + 12 * s
    RB1 = lambda s: 104 + 12 * s
    RB0 = lambda s: 108 + 12 * s
    nreads = lambda d: 4 if d < 32 else 3
    def cissue(d):
        s = d % NSc
        p(f"ds_read_b64 {vr(RA(s),2)}, v45 offset:{64*d}")
        p(f"ds_read_b64 {vr(RA(s)+2,2)}, v45 offset:{64*d+8}")
        p(f"ds_read_b128 {vr(RB1(s),4)}, v46 offset:{(64-d)*16}")
        if d < 32: p(f"ds_read_b128 {vr(RB0(s),4)}, v46 offset:{(32-d)*16}")
    PDc = 3
    b2jobs = [("w1", k) for k in range(nb1, nb1 + OPT.get("nb2", 14))]
    b2at = {OPT.get("b2start", 2) + OPT.get("b2step", 4) * i: j for i, j in enumerate(b2jobs)}
    idB2 = None
    for d in range(PDc): cissue(d)
    for d in range(64):
        later = sum(nreads(e) for e in range(d + 1, min(d + PDc - 1, 63) + 1))
        p(f"s_waitcnt lgkmcnt({later})")
        if d + PDc < 64: cissue(d + PDc)
        s = d % NSc
        c1 = vr(A1, 16) if d > 0 else "0"; c0 = vr(A0, 16) if d > 0 else "0"
        p(f"v_mfma_f32_32x32x16_bf16 {vr(A1,16)}, {vr(RA(s),4)}, {vr(RB1(s),4)}, {c1}")
        if d in b2at: idB2 = dma(p, b2at[d], b2jobs.index(b2at[d]))
        if d < 32: p(f"v_mfma_f32_32x32x16_bf16 {vr(A0,16)}, {vr(RA(s),4)}, {vr(RB0(s),4)}, {c0}")
        if d == OPT.get("f2at", 17):
            p.vwait(id_i2)
            p("s_barrier")
            publish(p, 4)
        if d == 20: touch_w2(p)
        if d == 58: id_fb = p.vm("buffer_load_dword v41, v40, s[16:19], 0 offen offset:4 sc1")
    p("s_nop 7")
    p.stamp(7)
    p("v_and_b32 v7, 63, v0")
    p("v_lshlrev_b32 v7, 4, v7")
    p("s_lshl_b32 s62, s52, 12")
    p(f"s_add_u32 s62, s62, {LE}")
    p("v_add_u32 v47, s62, v7")
    p("s_xor_b32 s63, s52, 1")
    p("s_lshl_b32 s63, s63, 12")
    p(f"s_add_u32 s63, s63, {LE}")
    p("v_add_u32 v48, s63, v7")
    p("s_lshl_b32 s62, s90, 9")
    p("s_add_u32 s62, s62, s91")
    p("s_add_u32 s62, s62, 520")
    p("v_lshlrev_b32 v5, 4, v3")
    p("v_lshlrev_b32 v6, 3, v4")
    p("v_sub_u32 v5, v5, v6")
    p("v_add_u32 v5, s62, v5")
    for r4 in range(4): p(f"ds_read_b64 {vr(100+2*r4,2)}, v5 offset:{PL*r4}")
    p("s_barrier")
    p("s_cmp_eq_u32 s90, 0")
    p("s_cbranch_scc1 CV_H0")
    for j in range(4): p(f"ds_write_b128 v47, {vr(A0+4*j,4)} offset:{1024*j}")
    p("s_nop 1")
    for j in range(16): p(f"v_mov_b32 v{A0+j}, v{A1+j}")
    p("s_branch CV_JOIN")
    p.label("CV_H0")
    for j in range(4): p(f"ds_write_b128 v47, {vr(A1+4*j,4)} offset:{1024*j}")
    p.label("CV_JOIN")
    p("s_lshl_b32 s62, s88, 16")
    p("s_and_b32 s63, s88, 0xffff0000")
    p("s_cmp_eq_u32 s89, 0")
    p("s_cselect_b32 s62, s62, s63")
    p("s_waitcnt lgkmcnt(0)")
    p("s_barrier")
    for j in range(4): p(f"ds_read_b128 {vr(A1+4*j,4)}, v48 offset:{1024*j}")
    for r4 in range(4):
        d0, d1 = 100 + 2 * r4, 101 + 2 * r4
        b = 110 + 4 * r4
        p(f"v_lshlrev_b32 v{b+3}, 16, v{d0}")
        p(f"v_and_b32 v{b+2}, 0xffff0000, v{d0}")
        p(f"v_lshlrev_b32 v{b+1}, 16, v{d1}")
        p(f"v_and_b32 v{b+0}, 0xffff0000, v{d1}")
    for j in range(16): p(f"v_fma_f32 v{A0+j}, v{110+j}, s62, v{A0+j}")
    p("s_waitcnt lgkmcnt(0)")
    for j in range(16): p(f"v_add_f32 v{A0+j}, v{A0+j}, v{A1+j}")
    for r4 in range(4):
        p(f"v_cvt_pk_bf16_f32 v{100+2*r4}, v{A0+4*r4}, v{A0+4*r4+1}")
        p(f"v_cvt_pk_bf16_f32 v{101+2*r4}, v{A0+4*r4+2}, v{A0+4*r4+3}")
    sanitize(p, range(100, 108))
    for u in range(2):
        p(f"v_permlane32_swap_b32 v{100+4*u}, v{102+4*u}")
        p(f"v_permlane32_swap_b32 v{101+4*u}, v{103+4*u}")
    p("s_lshl_b32 s62, s2, 1")
    p("s_add_u32 s62, s62, s89")
    p("s_lshl_b32 s62, s62, 12")
    p("s_lshl_b32 s63, s90, 11")
    p("s_add_u32 s62, s62, s63")
    p("v_and_b32 v5, 15, v0")
    p("v_lshlrev_b32 v5, 6, v5")
    p("v_bfe_u32 v6, v0, 4, 1")
    p("v_lshl_add_u32 v5, v6, 5, v5")
    p("v_bfe_u32 v6, v0, 5, 1")
    p("v_lshl_add_u32 v5, v6, 4, v5")
    p("v_add_u32 v5, s62, v5")
    for i in range(4): p(f"v_permlane16_swap_b32 v{100+i}, v{104+i}")
    p(f"s_mov_b32 s82, {hex(WS_YT)}")
    p.vm("buffer_store_dwordx4 v[100:103], v5, s[16:19], s82 offen sc1")
    p.vm("buffer_store_dwordx4 v[104:107], v5, s[16:19], s82 offen offset:1024 sc1")
    p.stamp(8)
    nw1 = nb1 + len(b2jobs)
    if idB2 is not None:
        p.vwait(idB2)
        for i, j in enumerate(b2jobs): tr(p, j, i)
        p("s_waitcnt lgkmcnt(0)")
    b3 = [("w1", k) for k in range(nw1, 32)] + [("w2", k) for k in range(OPT.get("nw2a", 4))]
    slot_of = {}
    idB3 = None
    for i, j in enumerate(b3):
        slot_of[j] = i; idB3 = dma(p, j, i)
    poll_flags(p, "CB", 40, 41, 4, first_issued=id_fb)
    p.stamp(9)
    p3(p, False)
    epoch_update(p)
    srd(p, 28, 40, F * 2); srd(p, 32, 44, S * 2)
    p("s_lshl_b32 s62, s57, 7")
    p("s_and_b32 s63, s52, 1")
    p("s_lshl_b32 s63, s63, 6")
    p("s_add_u32 s62, s62, s63")
    p("s_or_b32 s62, s62, s95")
    p("v_bfe_u32 v2, v0, 5, 1")
    p("v_lshl_add_u32 v2, v2, 3, s62")
    for r4 in range(4): p.vm(f"buffer_load_dwordx2 {vr(16+2*r4,2)}, v2, s[28:31], 0 offen offset:{16*r4}")
    for j in b3:
        if j[0] == "w1": tr(p, j, slot_of[j])
    p("s_waitcnt lgkmcnt(0)")
    nfree = [i for i in range(14) if i not in [slot_of[j] for j in b3 if j[0] == "w2"]]
    b3b = [("w2", k) for k in range(OPT.get("nw2a", 4), OPT.get("nw2a", 4) + OPT.get("nw2b", 8))]
    for i, j in enumerate(b3b):
        slot_of[j] = nfree[i]; dma(p, j, nfree[i])
    w2_early = [j for j in b3 if j[0] == "w2"] + b3b
    p("v_and_b32 v2, 63, v0")
    p("s_lshl_b32 s62, s52, 6")
    p("v_add_u32 v2, s62, v2")
    p("v_mul_u32_u24 v2, 7168, v2")
    p("s_lshl_b32 s62, s58, 10")
    p("s_or_b32 s62, s62, s95")
    p("v_add_u32 v42, s62, v2")
    def gate4():
        p(f"s_mov_b32 s82, {hex(WS_HN)}")
        p.vm("buffer_load_dword v43, v42, s[16:19], s82 offen sc1")
    poll(p, "G4", gate4, [43], 44, sleep0=OPT.get("sl_g40", 0), sleep=OPT.get("sl_g4", 2))
    p.stamp(12)
    b4 = [("w2", k) for k in range(len(w2_early), min(len(w2_early) + 14, 28))]
    b4ids = {}
    state = {"i": 0}
    def hook4(where, ks):
        if where == "end" and ks < len(w2_early):
            j = w2_early[ks]; tr(p, j, slot_of[j])
        if where == "top" and ks + PD >= 32:
            n = 2
            if state["i"] == 0: p("s_waitcnt lgkmcnt(0)")
            for _ in range(n):
                if state["i"] < len(b4):
                    j = b4[state["i"]]; slot_of[j] = state["i"]; b4ids[j] = dma(p, j, state["i"]); state["i"] += 1
    assert len(w2_early) <= 32 - PD - 2
    gemm_loop(p, "P4", 32, V_O4A, V_O4B, WS_HN, True, hook4)
    while state["i"] < len(b4):
        j = b4[state["i"]]; slot_of[j] = state["i"]; b4ids[j] = dma(p, j, state["i"]); state["i"] += 1
    p.stamp(13)
    gemm_reduce(p)
    for r4 in range(4):
        unpack(p, 96 + 4 * r4, 97 + 4 * r4, 16 + 2 * r4)
        unpack(p, 98 + 4 * r4, 99 + 4 * r4, 17 + 2 * r4)
    for e in range(16): p(f"v_add_f32 v{64+e}, v{64+e}, v{96+e}")
    p("s_mov_b32 s62, 0xc0135761")
    p("s_mov_b32 s63, 0xbdd2d3e8")
    p("v_mov_b32 v40, s62")
    for e in range(16): p(f"v_mul_f32 v{96+e}, v{64+e}, v{64+e}")
    for e in range(16): p(f"v_fma_f32 v{96+e}, v{96+e}, s63, v40")
    for e in range(16): p(f"v_mul_f32 v{96+e}, v{96+e}, v{64+e}")
    for e in range(16): p(f"v_exp_f32 v{96+e}, v{96+e}")
    for e in range(16): p(f"v_add_f32 v{96+e}, 1.0, v{96+e}")
    for e in range(16): p(f"v_rcp_f32 v{96+e}, v{96+e}")
    for e in range(16): p(f"v_mul_f32 v{64+e}, v{64+e}, v{96+e}")
    for r4 in range(4):
        p(f"v_cvt_pk_bf16_f32 v{96+2*r4}, v{64+4*r4}, v{65+4*r4}")
        p(f"v_cvt_pk_bf16_f32 v{97+2*r4}, v{66+4*r4}, v{67+4*r4}")
    sanitize(p, range(96, 104))
    for u in range(2):
        p(f"v_permlane32_swap_b32 v{96+4*u}, v{98+4*u}")
        p(f"v_permlane32_swap_b32 v{97+4*u}, v{99+4*u}")
    p(f"s_mov_b32 s82, {hex(WS_U)}"); p(f"s_mov_b32 s83, {hex(WS_U+14336)}")
    p.vm(f"buffer_store_dwordx4 v[96:99], v{V_UST}, s[16:19], s82 offen sc1")
    p.vm(f"buffer_store_dwordx4 v[100:103], v{V_UST}, s[16:19], s83 offen sc1")
    p.stamp(14)
    b5 = [("w2", k) for k in range(len(w2_early) + len(b4), 28)]
    if b4:
        p.vwait(b4ids[b4[-1]])
        for j in b4: tr(p, j, slot_of[j])
        p("s_waitcnt lgkmcnt(0)")
    idB5 = None
    for i, j in enumerate(b5):
        slot_of[j] = i; idB5 = dma(p, j, i)
    p("v_and_b32 v2, 31, v0")
    p("s_lshl_b32 s62, s59, 6")
    p("s_and_b32 s63, s52, 1")
    p("s_lshl_b32 s63, s63, 5")
    p("s_add_u32 s62, s62, s63")
    p("v_add_u32 v2, s62, v2")
    p("v_lshlrev_b32 v3, 1, v2")
    p("v_mul_u32_u24 v2, 896, v2")
    p("s_lshl_b32 s62, s60, 7")
    p("s_lshr_b32 s63, s52, 1")
    p("s_lshl_b32 s63, s63, 6")
    p("s_add_u32 s62, s62, s63")
    p("v_add_u32 v2, s62, v2")
    p("v_bfe_u32 v4, v0, 5, 1")
    p("v_lshl_add_u32 v44, v4, 4, v2")
    p.vm("buffer_load_ushort v45, v3, s[32:35], 0 offen")
    srd(p, 96, 46, SZ_SD)
    p("v_and_b32 v2, 63, v0")
    p("s_mul_i32 s62, s52, 56")
    p("v_add_u32 v3, s62, v2")
    p("v_mul_u32_u24 v3, 7168, v3")
    p("s_lshl_b32 s62, s60, 10")
    p("v_add_u32 v3, s62, v3")
    p("v_cmp_gt_u32 vcc, 56, v2")
    p("v_cndmask_b32 v42, v249, v3, vcc")
    def gate5():
        p(f"s_mov_b32 s82, {hex(WS_U)}")
        p.vm("buffer_load_dword v43, v42, s[16:19], s82 offen sc1")
    poll(p, "G5", gate5, [43], 46, sleep0=OPT.get("sl_g50", 0), sleep=OPT.get("sl_g5", 2))
    p.stamp(15)
    def hook5(where, ks):
        if where == "pre":
            p(f"s_mov_b32 s81, {hex(WS_H)}")
            p.vm("buffer_load_dwordx4 v[48:51], v44, s[16:19], s81 offen sc1")
            p.vm("buffer_load_dwordx4 v[52:55], v44, s[16:19], s81 offen offset:32 sc1")
            for j in b5: tr(p, j, slot_of[j])
            p("s_waitcnt lgkmcnt(0)")
    gemm_loop(p, "P5", 28, V_O5A, V_O5B, WS_U, False, hook5)
    p.stamp(16)
    gemm_reduce(p)
    def hloads():
        p(f"s_mov_b32 s81, {hex(WS_H)}")
        p.vm("buffer_load_dwordx4 v[48:51], v44, s[16:19], s81 offen sc1")
        p.vm("buffer_load_dwordx4 v[52:55], v44, s[16:19], s81 offen offset:32 sc1")
    p.vwait_all()
    check_sent(p, range(48, 56), 46)
    p("s_cbranch_vccz H_OK")
    poll(p, "PH", hloads, range(48, 56), 46)
    p.label("H_OK")
    for u in range(2):
        for r in range(4): p(f"v_permlane32_swap_b32 v{64+8*u+r}, v{64+8*u+4+r}")
    p("v_lshlrev_b32 v45, 16, v45")
    for u in range(2):
        for e in range(4): unpack(p, 96 + 8 * u + 2 * e, 97 + 8 * u + 2 * e, 48 + 4 * u + e)
    for e in range(16): p(f"v_add_f32 v{64+e}, v{64+e}, v45")
    for e in range(16): p(f"v_add_f32 v{64+e}, v{64+e}, v{96+e}")
    for u in range(2):
        for e in range(4): p(f"v_cvt_pk_bf16_f32 v{96+4*u+e}, v{64+8*u+2*e}, v{65+8*u+2*e}")
    p.vm("buffer_store_dwordx4 v[96:99], v44, s[96:99], 0 offen")
    p.vm("buffer_store_dwordx4 v[100:103], v44, s[96:99], 0 offen offset:32")
    p("s_branch FIN")
    p.label("CPATH")
    p.nvm, p.done = nvm0, done0
    srd(p, 20, 38, S * F * 2); srd(p, 24, 42, F * S * 2)
    id_q = q_loads(p)
    id_i2 = init_stores(p, [(V_HN, WS_HN, (0, 16)), (V_HN, WS_H, (0, 16))])
    touch_w1(p)
    touch_w2(p)
    p.vwait(id_i2)
    p("v_readfirstlane_b32 s3, v151")
    p("s_add_u32 s3, s3, 0x9e3779b9")
    p("s_barrier")
    publish(p, 4)
    q_stats(p)
    flagB_addr(p)
    p("s_sleep 40")
    poll_flags(p, "CB", 40, 41, 4, sleep=16)
    p3(p, True)
    p.label("FIN")
    if DIAG:
        p.vwait_all()
        p.stamp(17)
        p("v_and_b32 v1, 63, v0")
        p("s_lshl_b32 s62, s2, 2")
        p("s_add_u32 s62, s62, s52")
        p("s_lshl_b32 s62, s62, 7")
        p(f"s_add_u32 s62, s62, {hex(WS_STAMP)}")
        p("v_lshlrev_b32 v1, 2, v1")
        p("s_mov_b32 exec_lo, -1"); p("s_mov_b32 exec_hi, 0")
        p("buffer_store_dword v250, v1, s[16:19], s62 offen")
        if OPT.get("dbgwg") is not None:
            Ld = p.lab("DBG")
            p(f"s_cmp_lg_u32 s2, {OPT['dbgwg']}")
            p(f"s_cbranch_scc1 {Ld}")
            p("s_cmp_lg_u32 s52, 0")
            p(f"s_cbranch_scc1 {Ld}")
            srd(p, 28, 48, 256)
            p("v_readlane_b32 s62, v250, 0")
            p("s_nop 3")
            p("v_subrev_u32 v2, s62, v250")
            p("v_add_u32 v3, -8, v1")
            p("buffer_store_dword v2, v3, s[28:31], 0 offen")
            p.label(Ld)
    p.label("END")
    p("s_endpgm")
    for q in p.stubs: p.extend(q)

def touch_w1(p):
    p("s_mul_i32 s62, s56, 9363")
    p("s_lshr_b32 s62, s62, 16")
    p("s_lshl_b32 s63, s54, 8")
    p("v_add_u32 v2, s63, v0")
    p("v_and_b32 v3, 2047, v2")
    p("v_mul_u32_u24 v3, 3584, v3")
    p("v_lshrrev_b32 v2, 11, v2")
    p("v_add_u32 v4, s62, v2")
    p("v_lshl_add_u32 v4, v4, 7, v3")
    p.vm("buffer_load_dword v246, v4, s[20:23], 0 offen")
    p("s_add_u32 s62, s62, 4")
    p("s_lshl_b32 s62, s62, 7")
    p("v_add_u32 v4, s62, v3")
    p("v_cmp_eq_u32 vcc, 0, v2")
    p("v_cndmask_b32 v4, v249, v4, vcc")
    p.vm("buffer_load_dword v247, v4, s[20:23], 0 offen")

def touch_w2(p):
    p("s_lshl_b32 s63, s54, 8")
    p("v_add_u32 v2, s63, v0")
    p("v_and_b32 v7, 2047, v2")
    p("v_lshlrev_b32 v7, 12, v7")
    p("v_lshrrev_b32 v2, 11, v2")
    p("s_lshl_b32 s63, s53, 2")
    p("v_add_u32 v2, s63, v2")
    p("v_lshl_add_u32 v7, v2, 7, v7")
    p.vm("buffer_load_dword v248, v7, s[24:27], 0 offen")

def weight_addr(p):
    p("v_and_b32 v1, 63, v0")
    p("v_lshrrev_b32 v2, 3, v1")
    p("v_and_b32 v3, 7, v1")
    p("v_bfe_u32 v4, v1, 4, 1")
    p("v_lshlrev_b32 v4, 2, v4")
    p("v_xor_b32 v3, v3, v4")
    p("v_lshlrev_b32 v3, 4, v3")
    p(f"s_mul_i32 s62, s52, {512*F*2}")
    p("s_lshl_b32 s63, s57, 7")
    p("s_add_u32 s62, s62, s63")
    p("s_or_b32 s62, s62, s95")
    p(f"v_mul_u32_u24 v4, {F*2}, v2")
    p("v_add_u32 v4, v4, v3")
    p(f"v_add_u32 v{V_W0}, s62, v4")
    p(f"v_add_u32 v{V_W1}, {8*F*2-1024}, v{V_W0}")
    p(f"s_mul_i32 s62, s52, {448*S*2}")
    p("s_lshl_b32 s63, s59, 7")
    p("s_add_u32 s62, s62, s63")
    p(f"v_lshlrev_b32 v4, 12, v2")
    p("v_add_u32 v4, v4, v3")
    p(f"v_add_u32 v{V_X0}, s62, v4")
    p(f"v_add_u32 v{V_X1}, {8*S*2-1024}, v{V_X0}")
    p("v_lshrrev_b32 v5, 5, v1")
    p("v_bfe_u32 v6, v1, 2, 2")
    p("v_lshlrev_b32 v7, 7, v6")
    p("v_lshl_add_u32 v7, v5, 10, v7")
    p("v_bfe_u32 v2, v1, 4, 1")
    p("v_bfe_u32 v3, v1, 1, 1")
    p("v_lshl_add_u32 v2, v2, 1, v3")
    p("v_lshrrev_b32 v6, 1, v6")
    p("v_lshlrev_b32 v6, 2, v6")
    p("v_xor_b32 v2, v2, v6")
    p("v_lshl_add_u32 v7, v2, 4, v7")
    p("v_and_b32 v3, 1, v1")
    p("v_lshl_add_u32 v7, v3, 3, v7")
    p("s_and_b32 s62, s52, 1")
    p("s_lshl_b32 s62, s62, 6")
    p("v_xor_b32 v7, s62, v7")
    p(f"v_add_u32 v{V_T0}, s{S_STGW}, v7")
    p(f"v_xor_b32 v{V_T1}, 64, v{V_T0}")
    p(f"v_add_u32 v{V_T0B}, {7*8192}, v{V_T0}")
    p(f"v_add_u32 v{V_T1B}, {7*8192}, v{V_T1}")
    p("v_and_b32 v4, 31, v1")
    p("v_mul_u32_u24 v6, 7168, v5")
    p("v_lshl_add_u32 v4, v4, 4, v6")
    p("s_lshr_b32 s63, s52, 1")
    p("s_lshl_b32 s63, s63, 9")
    p(f"s_mul_i32 s62, s52, {64*7168}")
    p("s_add_u32 s62, s62, s63")
    p("s_lshl_b32 s81, s58, 10")
    p("s_add_u32 s62, s62, s81")
    p("s_or_b32 s62, s62, s95")
    p(f"v_add_u32 v{V_O4A}, s62, v4")
    p(f"v_xor_b32 v{V_O4B}, 512, v{V_O4A}")
    p(f"s_mul_i32 s62, s52, {56*7168}")
    p("s_add_u32 s62, s62, s63")
    p("s_lshl_b32 s81, s60, 10")
    p("s_add_u32 s62, s62, s81")
    p(f"v_add_u32 v{V_O5A}, s62, v4")
    p(f"v_xor_b32 v{V_O5B}, 512, v{V_O5A}")

def u_store_addr(p):
    p("v_and_b32 v2, 31, v0")
    p("v_bfe_u32 v5, v0, 5, 1")
    p("v_mul_u32_u24 v5, 7168, v5")
    p("v_lshl_add_u32 v2, v2, 4, v5")
    p("s_lshl_b32 s62, s57, 3")
    p("s_and_b32 s63, s52, 1")
    p("s_lshl_b32 s63, s63, 2")
    p("s_add_u32 s62, s62, s63")
    p("s_mul_i32 s62, s62, 7168")
    p("s_lshl_b32 s63, s58, 10")
    p("s_add_u32 s62, s62, s63")
    p("s_lshr_b32 s63, s52, 1")
    p("s_lshl_b32 s63, s63, 9")
    p("s_add_u32 s62, s62, s63")
    p("s_or_b32 s62, s62, s95")
    p(f"v_add_u32 v{V_UST}, s62, v2")

HEADER = open(__file__.replace("gen_v2.py", "header.txt")).read()
def main(path):
    name = NAME + "_kernel"
    p = K(); main_kernel(p)
    out = [HEADER, f"; @launch grid=(256,1,1) block=(256,1,1) lds={LDS_BYTES}\n",
           '.amdgcn_target "amdgcn-amd-amdhsa--gfx950"\n.text\n',
           f".globl {name}\n.p2align 8\n.type {name},@function\n{name}:\n",
           render(pad_hazards(p.lines)),
           f""".section .rodata,"a"
.p2align 6
.amdhsa_kernel {name}
  .amdhsa_next_free_vgpr 512
  .amdhsa_next_free_sgpr 102
  .amdhsa_accum_offset 256
  .amdhsa_group_segment_fixed_size 0
  .amdhsa_kernarg_size 112
  .amdhsa_user_sgpr_count 2
  .amdhsa_user_sgpr_kernarg_segment_ptr 1
  .amdhsa_system_sgpr_workgroup_id_x 1
  .amdhsa_float_denorm_mode_32 3
.end_amdhsa_kernel
"""]
    open(path, "w").write("".join(out))

if __name__ == "__main__":
    DIAG = "--diag" in sys.argv
    for a in sys.argv[2:]:
        if "=" in a:
            k, v = a.split("="); OPT[k] = int(v)
    main(sys.argv[1])
```

```python
import sys, re
from asmlib import *

NAME = "sequential_preLN__ssm_conv_h3__mixer_token_mlp__prompt"
S, D, F = 2048, 448, 1792
WS_FLAG, WS_EPOCH, WS_FLAG4 = 0x0, 0x8000, 0x10000
WS_XR, WS_YT, WS_H, WS_HN, WS_U, WS_STAMP = 0x100000, 0x300000, 0x500000, 0x700000, 0x900000, 0xC00000
WS_SIZE = 0x1000000
SZ_SD = S * D * 2
BIG = 0x80000000
POLL_CAP = 40000
XCH, XPL = 4608, 2304
LK, CP = 9216, 4160
LST_Q, LST_H = 46080, 46336
STG = 49152
TB = STG + 13 * 8192
LDS_BYTES = 163840
DIAG = False
OPT = dict(qspos=1, nTail=0, rot=3, help=1, csleep=0, flowD=6, flowE=6, flowF=6, helpw1=1, nt_kv=1, nt_f=1, nt_q=1, nH1=2, initfirst=1,
           qpos=0, latef1=0, codepf=1, b2start=1, b2step=2, nC=4, nD=18, nD2=5, nP3=0, nE=16, nE2=6, nPost=0, nMid=8, nF2=5)
def O(k, d): return OPT.get(k, d)

class K(Prog):
    def __init__(self):
        super().__init__()
        self.nvm = 0; self.done = 0; self.uid = 0; self.nlds = 0; self.ldone = 0
    def __call__(self, s, *a):
        for ln in s.strip("\n").split("\n"):
            ln = ln.strip()
            if not ln: continue
            self.lines.append(ln)
            if ln.startswith("ds_"): self.nlds += 1
            m = re.search(r"lgkmcnt\((\d+)\)", ln)
            if m and ln.startswith("s_waitcnt"): self.ldone = max(self.ldone, self.nlds - int(m.group(1)))
    def lwait(self, idx):
        if idx < self.ldone: return
        self(f"s_waitcnt lgkmcnt({min(self.nlds - 1 - idx, 14)})")
    def vm(self, text):
        self(text); self.nvm += 1
        return self.nvm - 1
    def vwait(self, idx):
        if idx < self.done: return
        n = min(self.nvm - 1 - idx, 62)
        self(f"s_waitcnt vmcnt({n})")
        self.done = max(self.done, self.nvm - n)
    def vwait_all(self):
        self("s_waitcnt vmcnt(0)"); self.done = self.nvm
    def lab(self, base):
        self.uid += 1
        return f"{base}_{self.uid}"
    def stamp(self, i):
        if DIAG:
            self("s_memtime s[84:85]" if O("cyc", 0) else "s_memrealtime s[84:85]")
            self("s_waitcnt lgkmcnt(0)")
            self(f"v_writelane_b32 v250, s84, {i}")

def srd(p, dst, ptr, size):
    p(f"s_mov_b32 s{dst}, s{ptr}")
    p(f"s_and_b32 s{dst+1}, s{ptr+1}, 0xffff")
    p(f"s_mov_b32 s{dst+2}, {hex(size)}")
    p(f"s_mov_b32 s{dst+3}, 0x20000")
def unpack(p, lo, hi, src):
    p(f"v_lshlrev_b32 v{lo}, 16, v{src}")
    p(f"v_and_b32 v{hi}, 0xffff0000, v{src}")
def sanitize(p, regs):
    for r in regs: p(f"v_min_u32 v{r}, -2, v{r}")
def POL(cat): return " nt" if O("nt_" + cat, O("nt", 0)) else ""

def tail_of_poll(p, L, Ld, sleep):
    p(f"s_cbranch_vccz {Ld}")
    p("s_add_u32 s80, s80, 1")
    p(f"s_cmp_gt_u32 s80, {POLL_CAP}")
    p(f"s_cbranch_scc1 {Ld}")
    p(f"s_sleep {sleep}")
    p(f"s_branch {L}")
    p.label(Ld)

def poll_data(p, name, loads, regs, tmp, sleep0=0, sleep=2, first_issued=None):
    L = p.lab(name); Ld = L + "_ok"; Lc = L + "_chk"
    if sleep0: p(f"s_sleep {sleep0}")
    p("s_mov_b32 s80, 0")
    if first_issued is not None:
        p.vwait(first_issued)
        p(f"s_branch {Lc}")
    p.label(L)
    if first_issued is not None:
        n0, d0 = p.nvm, p.done
        loads(); p("s_waitcnt vmcnt(0)")
        p.nvm, p.done = n0, d0
    else:
        loads()
        p.vwait_all()
    p.label(Lc)
    regs = list(regs)
    p(f"v_max3_u32 v{tmp}, v{regs[0]}, v{regs[1]}, v{regs[2]}")
    p(f"v_max3_u32 v{tmp+1}, v{regs[3]}, v{regs[4]}, v{regs[5]}")
    p(f"v_max3_u32 v{tmp}, v{tmp}, v{regs[6]}, v{regs[7]}")
    p(f"v_max_u32 v{tmp}, v{tmp}, v{tmp+1}")
    p(f"v_cmp_eq_u32 vcc, -1, v{tmp}")
    tail_of_poll(p, L, Ld, sleep)

def poll_flags(p, name, vaddr, vdst, off, first_issued=None, sleep=2, sleep0=0):
    L = p.lab(name); Ld = L + "_ok"; Lc = L + "_chk"
    if sleep0: p(f"s_sleep {sleep0}")
    p("s_mov_b32 s80, 0")
    if first_issued is not None:
        p.vwait(first_issued)
        p(f"s_branch {Lc}")
    p.label(L)
    if first_issued is not None:
        p(f"buffer_load_dword v{vdst}, v{vaddr}, s[16:19], 0 offen offset:{off} sc1")
        p("s_waitcnt vmcnt(0)")
    else:
        p.vm(f"buffer_load_dword v{vdst}, v{vaddr}, s[16:19], 0 offen offset:{off} sc1")
        p.vwait_all()
    p.label(Lc)
    p(f"v_cmp_le_i32 vcc, 0, v{vaddr}")
    p(f"v_mov_b32 v{vdst+1}, s3")
    p(f"v_cndmask_b32 v{vdst}, v{vdst+1}, v{vdst}, vcc")
    p(f"v_cmp_ne_u32 vcc, s3, v{vdst}")
    tail_of_poll(p, L, Ld, sleep)

def publish(p, soff_code, off, only_p4=False):
    L = p.lab("PUB")
    p("s_cmp_lg_u32 s52, 0")
    p(f"s_cbranch_scc1 {L}")
    if only_p4:
        p("s_cmp_lg_u32 s95, 0")
        p(f"s_cbranch_scc1 {L}")
    soff_code()
    p("v_mov_b32 v2, s3")
    p("s_mov_b64 exec, 1")
    p(f"buffer_store_dword v2, off, s[16:19], s62 offset:{off} sc1")
    p("s_mov_b64 exec, -1")
    p.label(L)

V_W0, V_W1, V_X0, V_X1, V_T0, V_T1, V_T0B, V_T1B = 24, 25, 26, 27, 28, 29, 30, 31
V_O4A, V_O4B, V_O5A, V_O5B, V_YA, V_HROW, V_HNA, V_UST = 32, 33, 34, 35, 36, 37, 38, 39
V_YB, V_HNB = 241, 242
S_STGW, S_W1, S_W2, S_ST = 61, 92, 93, 94
def adv(p, s, stride, begin, n, wrap=True):
    p(f"s_add_u32 s{s}, s{s}, {stride}")
    if not wrap: return
    p(f"s_cmp_eq_u32 s{s}, {hex(begin + n*stride)}")
    p(f"s_cselect_b32 s{s}, {hex(begin)}, s{s}")
def dma(p, job, slot):
    mat, k = job
    if skipjobs(): return p.nvm - 1
    p(f"s_add_u32 m0, s{S_STGW}, {slot*8192}")
    v0_, v1_, sr_, sc = (V_W0, V_W1, "s[20:23]", S_W1) if mat == "w1" else (V_X0, V_X1, "s[24:27]", S_W2)
    pol = POL("w1d" if mat == "w1" else "w2d")
    if mat == "w1": adv(p, sc, 16 * F * 2, 0, 32)
    else: adv(p, sc, 16 * S * 2, 0, 28, wrap=O("rot", 2) != 3)
    p.vm(f"buffer_load_dwordx4 v{v0_}, {sr_}, s{sc} offen{pol} lds")
    return p.vm(f"buffer_load_dwordx4 v{v1_}, {sr_}, s{sc} offen offset:1024{pol} lds")
def tr(p, job, slot):
    mat, k = job
    if skipjobs(): return
    for tau in range(2):
        va = (V_T0, V_T1)[tau] if slot < 7 else (V_T0B, V_T1B)[tau]
        for u in range(2):
            p(f"ds_read_b64_tr_b16 {ar(8*k+4*tau+2*u,2)}, v{va} offset:{(slot%7)*8192+512*u}")

def skipjobs(): return O("skipjobs", 0)
class Pref:
    def __init__(self, p):
        self.p = p
        self.queue = [("w1", k) for k in range(32)] + [("w2", k) for k in range(28)]
        self.free = list(range(13)); self.freeing = []
        self.inflight = []
        self.areg_free = 0
    def reap(self, force=False):
        if force and self.freeing: self.p.lwait(max(e[1] for e in self.freeing))
        for e in list(self.freeing):
            if e[1] < self.p.ldone: self.freeing.remove(e); self.free.append(e[0])
    def issue(self, n, only=None, force=True):
        done = 0
        while done < n and self.queue:
            if only and self.queue[0][0] != only: break
            self.reap()
            if not self.free:
                if force and self.freeing: self.reap(True)
                else: break
            j = self.queue.pop(0); sl = self.free.pop(0)
            self.inflight.append((j, sl, dma(self.p, j, sl))); done += 1
        return done
    def can_tr(self, j): return j[0] == "w1" or j[1] < self.areg_free
    def collect(self, maxn=99, only_done=False):
        todo = [e for e in self.inflight if self.can_tr(e[0])][:maxn]
        if only_done: todo = [e for e in todo if e[2] < self.p.done]
        if not todo: return 0
        for e in todo:
            self.p.vwait(e[2])
            tr(self.p, e[0], e[1]); self.inflight.remove(e); self.freeing.append((e[1], self.p.nlds - 1))
        return len(todo)
    def tick(self, lag):
        if len([e for e in self.inflight if self.can_tr(e[0])]) >= lag: self.collect(maxn=1)
        self.issue(1, force=False)
    def flow(self, n, lag):
        for _ in range(n):
            if not self.queue: break
            tr_ok = [e for e in self.inflight if self.can_tr(e[0])]
            if len(tr_ok) >= lag or (not self.free and not self.freeing): self.collect(maxn=1)
            self.issue(1)
    def release(self, emit=True): self.reap(force=emit)
    def w1_left(self): return [j for j in self.queue if j[0] == "w1"] + [e[0] for e in self.inflight if e[0][0] == "w1"]

def row_stats(p, base, lds, finish):
    for r in range(8): p(f"v_permlane32_swap_b32 v{base+2*r}, v{base+2*r+1}")
    for r in range(8): p(f"v_add_f32 v{base+2*r}, v{base+2*r}, v{base+2*r+1}")
    for k in range(4): p(f"v_permlane16_swap_b32 v{base+4*k}, v{base+4*k+2}")
    for k in range(4): p(f"v_add_f32 v{base+4*k}, v{base+4*k}, v{base+4*k+2}")
    for sh in (8, 4, 2, 1):
        for k in range(4): p(f"v_add_f32_dpp v{base+4*k}, v{base+4*k}, v{base+4*k} row_ror:{sh} row_mask:0xf bank_mask:0xf")
    p("s_mov_b32 exec_lo, 0x00010001")
    p("s_mov_b32 exec_hi, 0x00010001")
    for k in range(4): p(f"ds_write_b32 v243, v{base+4*k} offset:{lds+64*k}")
    p("s_mov_b64 exec, -1")
    p("s_mov_b32 s62, 0x3b124925")
    p("s_mov_b32 s63, 0x3727c5ac")
    p("s_waitcnt lgkmcnt(0)")
    p("s_barrier")
    p(f"ds_read_b128 {vr(base,4)}, v244 offset:{lds}")
    p(f"ds_read_b128 {vr(base+4,4)}, v244 offset:{lds+16}")
    p("s_waitcnt lgkmcnt(0)")
    b = base
    p(f"v_add_f32 v{b}, v{b}, v{b+1}"); p(f"v_add_f32 v{b+4}, v{b+4}, v{b+5}")
    p(f"v_add_f32 v{b+2}, v{b+2}, v{b+3}"); p(f"v_add_f32 v{b+6}, v{b+6}, v{b+7}")
    p(f"v_add_f32 v{b}, v{b}, v{b+2}"); p(f"v_add_f32 v{b+4}, v{b+4}, v{b+6}")
    p(f"v_mul_f32 v{b}, s62, v{b}")
    p(f"v_mul_f32 v{b+4}, s62, v{b+4}")
    p(f"v_fma_f32 v{b+4}, -v{b}, v{b}, v{b+4}")
    p(f"v_max_f32 v{b+4}, 0, v{b+4}")
    p(f"v_add_f32 v{b+5}, s63, v{b+4}")
    p(f"v_rsq_f32 v{b+5}, v{b+5}")
    finish(b)
    for r in range(8):
        p(f"v_readlane_b32 s{64+2*r}, v{b}, {r}")
        p(f"v_readlane_b32 s{65+2*r}, v{b+5}, {r}")

def p3_addresses(p):
    p("v_and_b32 v1, 63, v0")
    p("v_lshrrev_b32 v2, 1, v1")
    p("v_and_b32 v3, 1, v1")
    p("v_lshl_add_u32 v4, v3, 5, v2")
    p("s_lshl_b32 s62, s52, 6")
    p("v_add_u32 v4, s62, v4")
    p("s_mul_i32 s63, s55, 7168")
    p("v_lshl_add_u32 v5, v4, 2, s63")
    p("v_cmp_gt_u32 vcc, 224, v4")
    p(f"v_cndmask_b32 v{V_HROW}, v249, v5, vcc")
    p("v_add_u32 v2, s62, v2")
    p("v_lshlrev_b32 v2, 13, v2")
    p("v_lshl_add_u32 v2, v3, 4, v2")
    p("s_lshl_b32 s81, s55, 5")
    p(f"v_add_u32 v{V_YA}, s81, v2")
    p("s_cmp_lt_u32 s52, 3")
    p("s_mov_b32 s81, 0x40000")
    p(f"s_cselect_b32 s81, s81, {hex(BIG)}")
    p(f"v_add_u32 v{V_YB}, s81, v{V_YA}")
    p("s_lshr_b32 s63, s55, 1")
    p("s_lshl_b32 s63, s63, 11")
    p("s_and_b32 s81, s55, 1")
    p("s_lshl_b32 s81, s81, 9")
    p("s_add_u32 s63, s63, s81")
    p("s_lshl_b32 s81, s52, 19")
    p("s_add_u32 s63, s63, s81")
    p("v_lshrrev_b32 v2, 5, v1")
    p("v_lshlrev_b32 v2, 10, v2")
    p("v_and_b32 v3, 31, v1")
    p("v_lshl_add_u32 v2, v3, 4, v2")
    p(f"v_add_u32 v{V_HNA}, s63, v2")
    p("s_cmp_lt_u32 s52, 3")
    p("s_mov_b32 s81, 0x40000")
    p(f"s_cselect_b32 s81, s81, {hex(BIG)}")
    p(f"v_add_u32 v{V_HNB}, s81, v{V_HNA}")
    p("v_bfe_u32 v2, v0, 4, 1")
    p("v_lshlrev_b32 v2, 5, v2")
    p("v_bfe_u32 v3, v0, 5, 1")
    p("v_lshl_add_u32 v2, v3, 4, v2")
    p("s_lshl_b32 s81, s52, 2")
    p("v_add_u32 v243, s81, v2")
    p("v_and_b32 v2, 7, v0")
    p("v_lshlrev_b32 v244, 5, v2")

def q_loads(p):
    srd(p, 68, 4, SZ_SD)
    p("s_movk_i32 s62, 4480")
    last = None
    for r in range(8):
        so, off = ("0", 896 * r) if r < 5 else ("s62", 896 * (r - 5))
        last = p.vm(f"buffer_load_dword v{8+r}, v{V_HROW}, s[68:71], {so} offen offset:{off}{POL('q')}")
    return last

def q_stats(p, t0, t1):
    b = 208 if O("qspos", 1) == 1 else 208
    p("s_mov_b32 s62, 0x3f803f80")
    for r in range(8):
        p(f"v_dot2_f32_bf16 v{b+2*r}, v{8+r}, s62, 0")
        p(f"v_dot2_f32_bf16 v{b+2*r+1}, v{8+r}, v{8+r}, 0")
    p("s_nop 2")
    row_stats(p, b, LST_Q, lambda bb: p("s_nop 0"))
    if O("qspos", 1) == 1: q_expand(p)

def q_expand(p):
    for r in range(8): unpack(p, 208 + 2 * r, 209 + 2 * r, 8 + r)
    for r in range(8):
        p(f"v_pk_add_f32 {vr(192+2*r,2)}, {vr(208+2*r,2)}, {sr(64+2*r,2)} op_sel_hi:[1,0] neg_lo:[0,1] neg_hi:[0,1]")
    for r in range(8):
        p(f"v_pk_mul_f32 {vr(192+2*r,2)}, {vr(192+2*r,2)}, {sr(64+2*r,2)} op_sel:[0,1] op_sel_hi:[1,1]")

EVEN, ODD = "0x55555555", "0xaaaaaaaa"
def setvcc(p, m):
    p(f"s_mov_b32 vcc_lo, {m}"); p(f"s_mov_b32 vcc_hi, {m}")
QP = "quad_perm:[1,0,3,2] row_mask:0xf bank_mask:0xf"

def y_loads(p):
    p(f"s_mov_b32 s81, {hex(WS_YT)}")
    p.vm(f"buffer_load_dwordx4 v[48:51], v{V_YA}, s[16:19], s81 offen sc1")
    return p.vm(f"buffer_load_dwordx4 v[52:55], v{V_YB}, s[16:19], s81 offen sc1")

def p3(p, pf=None, yfirst=None):
    poll_data(p, "PY", lambda: y_loads(p), range(48, 56), 56, sleep0=O("sl_y0", 0), sleep=O("sl_y", 4), first_issued=yfirst)
    p.stamp(10)
    if pf is not None: pf.flow(O("nP3", 0), O("flowD", 4))
    setvcc(p, EVEN)
    for i in range(4): p(f"v_cndmask_b32_dpp v{40+i}, v{52+i}, v{48+i}, vcc {QP}")
    setvcc(p, ODD)
    for i in range(4): p(f"v_cndmask_b32_dpp v{44+i}, v{48+i}, v{52+i}, vcc {QP}")
    for ch in range(2):
        for e in range(4):
            unpack(p, 224 + 2 * (2 * e) + ch, 224 + 2 * (2 * e + 1) + ch, 40 + 4 * ch + e)
    for r in range(8):
        p(f"v_pk_fma_f32 {vr(208+2*r,2)}, {vr(192+2*r,2)}, {vr(224+2*r,2)}, {vr(208+2*r,2)}")
    for r in range(8): p(f"v_cvt_pk_bf16_f32 v{8+r}, v{208+2*r}, v{209+2*r}")
    p("s_mov_b32 s62, 0x3f803f80")
    for r in range(8):
        p(f"v_dot2_f32_bf16 v{224+2*r}, v{8+r}, s62, 0")
        p(f"v_dot2_f32_bf16 v{225+2*r}, v{8+r}, v{8+r}, 0")
    p(f"s_mov_b32 s82, {hex(WS_H)}"); p(f"s_mov_b32 s83, {hex(WS_H+4480)}")
    for r in range(8):
        so, off = ("s82", 896 * r) if r < 5 else ("s83", 896 * (r - 5))
        p.vm(f"buffer_store_dword v{8+r}, v{V_HROW}, s[16:19], {so} offen offset:{off} sc1")
    for r in range(8): unpack(p, 208 + 2 * r, 209 + 2 * r, 8 + r)
    def fin(b):
        p("s_nop 0")
        p(f"v_mul_f32 v{b+6}, v{b+5}, v{b+5}")
        p(f"v_mul_f32 v{b+6}, v{b+6}, v{b+4}")
        p(f"v_add_f32 v{b+6}, s63, v{b+6}")
        p(f"v_rsq_f32 v{b+6}, v{b+6}")
        p("s_nop 0")
        p(f"v_mul_f32 v{b+5}, v{b+5}, v{b+6}")
    row_stats(p, 224, LST_H, fin)
    for r in range(8):
        p(f"v_pk_add_f32 {vr(208+2*r,2)}, {vr(208+2*r,2)}, {sr(64+2*r,2)} op_sel_hi:[1,0] neg_lo:[0,1] neg_hi:[0,1]")
    for r in range(8):
        p(f"v_pk_mul_f32 {vr(208+2*r,2)}, {vr(208+2*r,2)}, {sr(64+2*r,2)} op_sel:[0,1] op_sel_hi:[1,1]")
    for ch in range(2):
        for e in range(4):
            p(f"v_cvt_pk_bf16_f32 v{48+4*ch+e}, v{208+2*(2*e)+ch}, v{208+2*(2*e+1)+ch}")
    setvcc(p, EVEN)
    for i in range(4): p(f"v_cndmask_b32_dpp v{40+i}, v{52+i}, v{48+i}, vcc {QP}")
    setvcc(p, ODD)
    for i in range(4): p(f"v_cndmask_b32_dpp v{44+i}, v{48+i}, v{52+i}, vcc {QP}")
    p(f"s_mov_b32 s82, {hex(WS_HN)}")
    p.vm(f"buffer_store_dwordx4 v[40:43], v{V_HNA}, s[16:19], s82 offen sc1")
    p.vm(f"buffer_store_dwordx4 v[44:47], v{V_HNB}, s[16:19], s82 offen sc1")
    p.stamp(11)
    p.vwait_all()
    p("s_barrier")
    publish(p, lambda: p("s_lshl_b32 s62, s2, 7"), 4)
    p.stamp(18)

def epoch_update(p):
    L = p.lab("EPU")
    p("s_cmp_lg_u32 s2, 0")
    p(f"s_cbranch_scc1 {L}")
    p("s_cmp_lg_u32 s52, 0")
    p(f"s_cbranch_scc1 {L}")
    p(f"s_mov_b32 s62, {hex(WS_EPOCH)}")
    p("v_mov_b32 v2, s3")
    p("s_mov_b64 exec, 1")
    p("buffer_store_dword v2, off, s[16:19], s62 sc1")
    p("s_mov_b64 exec, -1")
    p.label(L)

ACC = lambda b: 64 + 16 * b
OR = lambda s: 128 + 8 * s
NS = 8
def gemm_loop(p, N, va, vb, region, t_is_a, hook, wrap=True, init0=False):
    PD = O("pd", 7)
    ids = {}
    def issue(ks):
        s = ks % NS
        p.vm(f"buffer_load_dwordx4 {vr(OR(s),4)}, v{va}, s[16:19], s{S_ST} offen sc1")
        ids[ks] = p.vm(f"buffer_load_dwordx4 {vr(OR(s)+4,4)}, v{vb}, s[16:19], s{S_ST} offen sc1")
        adv(p, S_ST, 2048, region, N, wrap=wrap)
    def mfma(ks, tau, om):
        s = ks % NS; acc = ACC(tau + 2 * om)
        T = ar(8 * ks + 4 * tau, 4); Oo = vr(OR(s) + 4 * om, 4)
        c = vr(acc, 16) if (ks > 0 or (init0 and tau + om == 0)) else "0"
        if t_is_a: p(f"v_mfma_f32_32x32x16_bf16 {vr(acc,16)}, {T}, {Oo}, {c}")
        else: p(f"v_mfma_f32_32x32x16_bf16 {vr(acc,16)}, {Oo}, {T}, {c}")
    for ks in range(PD): issue(ks)
    hook("pre", -1)
    for ks in range(N):
        p.vwait(ids[ks])
        mfma(ks, 0, 0)
        if ks + PD < N: issue(ks + PD)
        hook("top", ks)
        mfma(ks, 1, 0); mfma(ks, 0, 1); mfma(ks, 1, 1)
        hook("end", ks)

def pk_add(p, d, a, b, n=16):
    for j in range(0, n, 2): p(f"v_pk_add_f32 {vr(d+j,2)}, {vr(a+j,2)}, {vr(b+j,2)}")

def gemm_reduce(p, mid=None):
    p("v_and_b32 v1, 63, v0")
    p("v_lshlrev_b32 v1, 4, v1")
    for m in range(1, 4):
        p(f"s_xor_b32 s62, s52, {m}")
        p("s_mul_i32 s62, s62, 12288")
        p(f"v_add_u32 v{1+m}, s62, v1")
    p("s_mul_i32 s62, s52, 12288")
    p("v_add_u32 v1, s62, v1")
    for m in range(1, 4):
        for j in range(4):
            p(f"ds_write_b128 v{1+m}, {vr(ACC(m)+4*j,4)} offset:{(m-1)*4096+1024*j}")
    p("s_waitcnt lgkmcnt(0)")
    p("s_barrier")
    for m in range(1, 4):
        for j in range(4):
            p(f"ds_read_b128 {vr(ACC(m)+4*j,4)}, v1 offset:{(m-1)*4096+1024*j}")
    if mid: mid()
    p("s_waitcnt lgkmcnt(8)")
    pk_add(p, ACC(0), ACC(0), ACC(1))
    p("s_waitcnt lgkmcnt(4)")
    pk_add(p, ACC(0), ACC(0), ACC(2))
    p("s_waitcnt lgkmcnt(0)")
    pk_add(p, ACC(0), ACC(0), ACC(3))

def fbbase(p, d):
    p(f"s_mul_i32 s{d}, s53, 3")
    p(f"s_min_u32 s81, s53, 4")
    p(f"s_add_u32 s{d}, s{d}, s81")

def tile_ids(p):
    p("s_and_b32 s53, s2, 7")
    p("s_lshr_b32 s54, s2, 3")
    p("s_lshl_b32 s55, s53, 5")
    p("s_add_u32 s55, s55, s54")
    p("s_mul_i32 s57, s54, 9363")
    p("s_lshr_b32 s57, s57, 16")
    p("s_mul_i32 s58, s57, 7")
    p("s_sub_u32 s58, s54, s58")
    fbbase(p, 62)
    p("s_add_u32 s57, s57, s62")
    p("s_mul_i32 s56, s57, 7")
    p("s_add_u32 s56, s56, s58")
    p("s_cmp_lt_u32 s53, 4")
    p("s_cselect_b32 s62, 28, 21")
    p("s_cmp_lt_u32 s54, s62")
    p(f"s_cselect_b32 s95, 0, {hex(BIG)}")
    p("s_mul_i32 s59, s54, 9363")
    p("s_lshr_b32 s59, s59, 16")
    p("s_mul_i32 s60, s59, 7")
    p("s_sub_u32 s60, s54, s60")
    p("s_lshl_b32 s62, s53, 2")
    p("s_add_u32 s59, s62, s59")
    rot = O("rot", 2)
    p("s_and_b32 s62, s57, 3"); p(f"s_mul_i32 s62, s62, {9 if rot == 1 else 0}"); p("s_mul_i32 s63, s58, 5"); p("s_add_u32 s62, s62, s63")
    p("s_and_b32 s90, s62, 31")
    p("s_and_b32 s62, s59, 3"); p(f"s_mul_i32 s62, s62, {7 if rot == 1 else 0}"); p("s_lshl_b32 s63, s60, 2"); p("s_add_u32 s62, s62, s63")
    p("s_cmp_ge_u32 s62, 28"); p("s_cselect_b32 s63, 28, 0"); p("s_sub_u32 s91, s62, s63")
    if not rot:
        p("s_mov_b32 s90, 0"); p("s_mov_b32 s91, 0")
    if rot >= 3:
        p("s_lshl_b32 s62, s58, 5"); p("s_add_u32 s62, s62, 3"); p("s_mul_i32 s62, s62, 9363"); p("s_lshr_b32 s90, s62, 16")
    if rot == 3: p("s_mov_b32 s91, 0")
    p(f"s_mul_i32 s{S_W1}, s90, {16*F*2}")
    p(f"s_sub_u32 s{S_W1}, s{S_W1}, {16*F*2}")
    p(f"s_mul_i32 s{S_W2}, s91, {16*S*2}")
    p(f"s_sub_u32 s{S_W2}, s{S_W2}, {16*S*2}")

def weight_addr(p):
    p("s_lshl_b32 s61, s52, 11")
    p(f"s_add_u32 s{S_STGW}, s{S_STGW}, {STG}")
    p("v_and_b32 v1, 63, v0")
    p("v_lshrrev_b32 v2, 3, v1")
    p("v_and_b32 v3, 7, v1")
    p("v_bfe_u32 v4, v1, 4, 1")
    p("v_lshlrev_b32 v4, 2, v4")
    p("v_xor_b32 v3, v3, v4")
    p("v_lshlrev_b32 v3, 4, v3")
    p(f"s_mul_i32 s62, s52, {512*F*2}")
    p("s_lshl_b32 s63, s57, 7")
    p("s_add_u32 s62, s62, s63")
    p("s_or_b32 s62, s62, s95")
    p(f"v_mul_u32_u24 v4, {F*2}, v2")
    p("v_add_u32 v4, v4, v3")
    p(f"v_add_u32 v{V_W0}, s62, v4")
    p(f"v_add_u32 v{V_W1}, {8*F*2-1024}, v{V_W0}")
    p(f"s_mul_i32 s62, s52, {448*S*2}")
    p("s_lshl_b32 s63, s59, 7")
    p("s_add_u32 s62, s62, s63")
    p(f"v_lshlrev_b32 v4, 12, v2")
    p("v_add_u32 v4, v4, v3")
    p(f"v_add_u32 v{V_X0}, s62, v4")
    p(f"v_add_u32 v{V_X1}, {8*S*2-1024}, v{V_X0}")
    if O("nullw", 0):
        for r in (V_W0, V_W1, V_X0, V_X1): p(f"v_mov_b32 v{r}, v249")
    p("v_lshrrev_b32 v5, 5, v1")
    p("v_bfe_u32 v6, v1, 2, 2")
    p("v_lshlrev_b32 v7, 7, v6")
    p("v_lshl_add_u32 v7, v5, 10, v7")
    p("v_bfe_u32 v2, v1, 4, 1")
    p("v_bfe_u32 v3, v1, 1, 1")
    p("v_lshl_add_u32 v2, v2, 1, v3")
    p("v_lshrrev_b32 v6, 1, v6")
    p("v_lshlrev_b32 v6, 2, v6")
    p("v_xor_b32 v2, v2, v6")
    p("v_lshl_add_u32 v7, v2, 4, v7")
    p("v_and_b32 v3, 1, v1")
    p("v_lshl_add_u32 v7, v3, 3, v7")
    p("s_and_b32 s62, s52, 1")
    p("s_lshl_b32 s62, s62, 6")
    p("v_xor_b32 v7, s62, v7")
    p(f"v_add_u32 v{V_T0}, s{S_STGW}, v7")
    p(f"v_xor_b32 v{V_T1}, 64, v{V_T0}")
    p(f"v_add_u32 v{V_T0B}, {7*8192}, v{V_T0}")
    p(f"v_add_u32 v{V_T1B}, {7*8192}, v{V_T1}")
    p("v_lshlrev_b32 v4, 4, v1")
    p("s_lshr_b32 s63, s52, 1")
    p("s_lshl_b32 s63, s63, 10")
    p("s_lshl_b32 s62, s52, 16")
    p("s_add_u32 s62, s62, s63")
    p("s_lshl_b32 s81, s58, 18")
    p("s_add_u32 s62, s62, s81")
    p("s_or_b32 s62, s62, s95")
    p(f"v_add_u32 v{V_O4A}, s62, v4")
    p(f"v_xor_b32 v{V_O4B}, 1024, v{V_O4A}")
    p(f"s_mul_i32 s62, s52, {28*2048}")
    p("s_add_u32 s62, s62, s63")
    p(f"s_mul_i32 s81, s60, {112*2048}")
    p("s_add_u32 s62, s62, s81")
    p(f"v_add_u32 v{V_O5A}, s62, v4")
    p(f"v_xor_b32 v{V_O5B}, 1024, v{V_O5A}")
    p("s_lshl_b32 s62, s57, 2")
    p("s_and_b32 s81, s52, 1")
    p("s_lshl_b32 s81, s81, 1")
    p("s_add_u32 s62, s62, s81")
    p("s_lshl_b32 s62, s62, 11")
    p(f"s_mul_i32 s81, s58, {112*2048}")
    p("s_add_u32 s62, s62, s81")
    p("s_add_u32 s62, s62, s63")
    p("s_or_b32 s62, s62, s95")
    p(f"v_add_u32 v{V_UST}, s62, v4")

def w1_touch(p):
    srd(p, 20, 38, S * F * 2)
    p("s_lshl_b32 s63, s54, 8")
    p("v_add_u32 v2, s63, v0")
    p("v_and_b32 v3, 2047, v2")
    p(f"v_mul_u32_u24 v3, {F*2}, v3")
    p("v_lshrrev_b32 v2, 11, v2")
    fbbase(p, 62)
    p("s_cmp_lt_u32 s53, 4")
    p("s_cselect_b32 s63, 4, 3")
    p("v_cmp_gt_u32 vcc, s63, v2")
    p("v_add_u32 v2, s62, v2")
    p("v_lshl_add_u32 v2, v2, 7, v3")
    p("v_cndmask_b32 v2, v249, v2, vcc")
    return p.vm("buffer_load_dword v246, v2, s[20:23], 0 offen")

def init_stores(p, regions):
    ids = []
    for j in range(4): p(f"v_mov_b32 v{4+j}, -1")
    for (v, so) in regions:
        sreg = 82 + (p.nvm & 1)
        p(f"s_mov_b32 s{sreg}, {hex(so)}")
        ids.append(p.vm(f"buffer_store_dwordx4 v[4:7], v{v}, s[16:19], s{sreg} offen sc1"))
    return ids[-1]

def main_kernel(p):
    p("s_cmp_ge_u32 s2, 256")
    p("s_cbranch_scc1 END")
    p("s_load_dwordx8 s[4:11], s[0:1], 0")
    p("s_load_dwordx4 s[12:15], s[0:1], 32")
    p("s_load_dwordx16 s[36:51], s[0:1], 48")
    if O("codepf", 0):
        p("s_getpc_b64 s[82:83]")
        p.label("L_PC")
        p("v_lshrrev_b32 v1, 6, v0")
        p("s_lshr_b32 s80, s2, 3")
        p("s_lshl_b32 s80, s80, 2")
        p("v_add_u32 v1, s80, v1")
        p("v_and_b32 v2, 63, v0")
        p("v_lshl_add_u32 v1, v2, 7, v1")
        p("v_lshlrev_b32 v1, 7, v1")
        p("s_mov_b32 s80, L_CODE_END-L_PC-4")
        p("v_min_u32 v1, s80, v1")
        p("v_cmp_gt_u32 vcc, 3, v2")
        p("s_and_saveexec_b64 s[80:81], vcc")
        p("global_load_dword v248, v1, s[82:83]")
        p("s_mov_b64 exec, s[80:81]")
    if DIAG: p("v_mov_b32 v250, 0")
    p(f"v_mov_b32 v249, {hex(BIG)}")
    p.stamp(0)
    p("v_lshrrev_b32 v1, 6, v0")
    p("s_lshr_b32 s86, s2, 5")
    p("s_and_b32 s87, s2, 31")
    p("v_readfirstlane_b32 s52, v1")
    p("v_lshrrev_b32 v3, 5, v0")
    p("v_and_b32 v4, 31, v0")
    p("s_mul_i32 s62, s87, 57344")
    p("s_lshl_b32 s63, s86, 7")
    p("s_add_u32 s62, s62, s63")
    p("v_mul_u32_u24 v128, 7168, v3")
    p("v_lshl_add_u32 v128, v4, 2, v128")
    p("v_add_u32 v128, s62, v128")
    p("v_subrev_u32 v129, 2688, v128")
    p("v_cmp_gt_u32 vcc, 2688, v128")
    p("v_cndmask_b32 v129, v129, v249, vcc")
    p("s_lshl_b32 s62, s86, 9")
    p("v_lshl_add_u32 v149, v4, 4, s62")
    p("s_lshl_b32 s62, s86, 18")
    p("s_lshl_b32 s63, s87, 7")
    p("s_add_u32 s62, s62, s63")
    p("v_lshrrev_b32 v5, 3, v0")
    p("v_lshlrev_b32 v150, 12, v5")
    p("v_and_b32 v6, 7, v0")
    p("v_lshl_add_u32 v150, v6, 4, v150")
    p("v_add_u32 v150, s62, v150")
    p("s_lshl_b32 s62, s2, 13")
    p("v_lshl_add_u32 v230, v0, 4, s62")
    if not O("lateids", 1): tile_ids(p)
    p("s_waitcnt lgkmcnt(0)")
    p.stamp(1)
    srd(p, 16, 50, WS_SIZE)
    p(f"s_mov_b32 s62, {hex(WS_EPOCH)}")
    p.vm("buffer_load_dword v151, off, s[16:19], s62 sc1")
    p("s_cmp_ge_u32 s2, 224")
    p("s_cbranch_scc1 CPATH")
    nvm0, done0 = p.nvm, p.done
    srd(p, 28, 6, SZ_SD); srd(p, 32, 8, SZ_SD); srd(p, 64, 10, D * 8)
    def kv_loads():
        p("s_movk_i32 s81, 4480")
        a = p.vm("buffer_load_dwordx4 v[152:155], v149, s[64:67], 0 offen")
        for j in range(3): p.vm(f"buffer_load_dword v{130+j}, v129, s[28:31], 0 offen offset:{896*j}{POL('kv')}")
        for r in range(8):
            so, off = ("0", 896 * r) if r < 5 else ("s81", 896 * (r - 5))
            b = p.vm(f"buffer_load_dword v{133+r}, v128, s[28:31], {so} offen offset:{off}{POL('kv')}")
        for r in range(8):
            so, off = ("0", 896 * r) if r < 5 else ("s81", 896 * (r - 5))
            c = p.vm(f"buffer_load_dword v{140+r+1}, v128, s[32:35], {so} offen offset:{off}{POL('kv')}")
        return a, b, c
    inits = [(150, WS_XR), (150, WS_XR + 131072)]
    if not O("lateyt", 1): inits += [(230, WS_YT), (230, WS_YT + 4096)]
    if O("initfirst", 1):
        id_xi = init_stores(p, inits); id_sk, id_k, id_v = kv_loads()
    else:
        id_sk, id_k, id_v = kv_loads(); id_xi = init_stores(p, inits)
    if O("lateids", 1): tile_ids(p)
    if O("tlb", 0):
        srd(p, 20, 38, S * F * 2); srd(p, 24, 42, F * S * 2); srd(p, 96, 46, SZ_SD)
        p("v_and_b32 v2, 63, v0")
        p("v_lshlrev_b32 v3, 20, v2")
        p("v_cmp_gt_u32 vcc, 8, v2")
        p("v_cndmask_b32 v3, v249, v3, vcc")
        p("s_cmp_eq_u32 s52, 0"); Lt = p.lab("TLB")
        p(f"s_cbranch_scc0 {Lt}")
        p("buffer_load_dword v246, v3, s[20:23], 0 offen")
        p("buffer_load_dword v247, v3, s[24:27], 0 offen")
        p("buffer_load_dword v248, v3, s[96:99], 0 offen")
        p("v_lshlrev_b32 v3, 21, v2")
        p("v_cmp_gt_u32 vcc, 5, v2")
        p("v_cndmask_b32 v3, v249, v3, vcc")
        p("s_mov_b32 s82, 0x2f0000")
        p("buffer_load_dword v245, v3, s[16:19], s82 offen")
        p.label(Lt)
    pf = Pref(p)
    if O("nA0", 0):
        srd(p, 20, 38, S * F * 2); srd(p, 24, 42, F * S * 2)
        weight_addr(p)
        pf.issue(O("nA0", 0))
    srd(p, 72, 12, SZ_SD)
    p("v_lshrrev_b32 v2, 7, v0")
    p("v_and_b32 v3, 127, v0")
    p("s_lshl_b32 s62, s2, 13")
    p("v_lshlrev_b32 v4, 12, v2")
    p("v_add_u32 v4, s62, v4")
    p("v_lshl_add_u32 v108, v3, 4, v4")
    p("v_subrev_u32 v88, 32, v108")
    p("v_cmp_gt_u32 vcc, 2, v3")
    p("v_cndmask_b32 v88, v88, v249, vcc")
    p("v_add_u32 v91, 4064, v108")
    p("v_cndmask_b32 v91, v249, v91, vcc")
    p("v_subrev_u32 v89, 16, v108")
    p("v_cmp_gt_u32 vcc, 1, v3")
    p("v_cndmask_b32 v89, v89, v249, vcc")
    p("v_add_u32 v92, 4080, v108")
    p("v_cndmask_b32 v92, v249, v92, vcc")
    p("v_add_u32 v90, 2016, v108")
    def f_loads():
        p.vm("buffer_load_dwordx4 v[64:67], v88, s[72:75], 0 offen" + POL("f"))
        p.vm("buffer_load_dwordx2 v[68:69], v89, s[72:75], 0 offen" + POL("f"))
        p.vm("buffer_load_dwordx4 v[72:75], v90, s[72:75], 0 offen" + POL("f"))
        p.vm("buffer_load_dwordx2 v[76:77], v90, s[72:75], 0 offen offset:16" + POL("f"))
        p.vm("buffer_load_dwordx4 v[80:83], v91, s[72:75], 0 offen" + POL("f"))
        return p.vm("buffer_load_dwordx2 v[84:85], v92, s[72:75], 0 offen" + POL("f"))
    if O("fpos", 0) == 0: id_f = f_loads()
    if O("w1touch", 0) == 1: w1_touch(p)
    p("s_lshl_b32 s63, s2, 2")
    p("s_load_dword s88, s[14:15], s63")
    p3_addresses(p)
    if O("qpos", 0) == 2: id_q = q_loads(p)
    if not O("nA0", 0):
        srd(p, 20, 38, S * F * 2); srd(p, 24, 42, F * S * 2)
        weight_addr(p)
    p("v_lshrrev_b32 v3, 5, v0")
    p("v_and_b32 v4, 31, v0")
    p("v_and_b32 v5, 7, v4")
    p("v_xor_b32 v5, v5, v3")
    p("v_lshlrev_b32 v5, 4, v5")
    p("v_lshl_add_u32 v5, v4, 8, v5")
    p(f"v_add_u32 v228, {TB}, v5")
    p("v_lshrrev_b32 v3, 3, v0")
    p("v_and_b32 v4, 7, v0")
    p("v_bfe_u32 v5, v0, 4, 3")
    p("v_xor_b32 v4, v4, v5")
    p("v_lshlrev_b32 v4, 4, v4")
    p("v_lshl_add_u32 v4, v3, 7, v4")
    p(f"v_add_u32 v229, {TB}, v4")
    if not O("latef1", 1):
        p.vwait(id_xi)
        p("v_readfirstlane_b32 s3, v151")
        p("s_add_u32 s3, s3, 0x9e3779b9")
        p("s_barrier")
        publish(p, lambda: p("s_lshl_b32 s62, s2, 7"), 0)
    pf.issue(O("nA", 0))
    p.vwait(id_sk)
    p("v_lshlrev_b32 v156, 16, v152"); p("v_lshlrev_b32 v157, 16, v154")
    p("v_and_b32 v158, 0xffff0000, v152"); p("v_and_b32 v159, 0xffff0000, v154")
    p("v_lshlrev_b32 v160, 16, v153"); p("v_lshlrev_b32 v161, 16, v155")
    p("v_and_b32 v162, 0xffff0000, v153"); p("v_and_b32 v163, 0xffff0000, v155")
    p.vwait(id_k)
    for r in range(11): unpack(p, 164 + 2 * r, 165 + 2 * r, 130 + r)
    for j in range(4):
        for r in range(8):
            x = 202 + 2 * r
            Kp = vr(164 + 2 * (r + 3 - j), 2); Wj = vr(156 + 2 * j, 2)
            if j == 0: p(f"v_pk_mul_f32 {vr(x,2)}, {Kp}, {Wj}")
            else: p(f"v_pk_fma_f32 {vr(x,2)}, {Kp}, {Wj}, {vr(x,2)}")
    p.vwait(id_v)
    p.stamp(2)
    if O("w1touch", 0) == 2: w1_touch(p)
    pf.issue(O("nKV", 0))
    for r in range(8): unpack(p, 186 + 2 * r, 187 + 2 * r, 141 + r)
    for r in range(8): p(f"v_pk_mul_f32 {vr(202+2*r,2)}, {vr(202+2*r,2)}, {vr(186+2*r,2)}")
    for ch in range(2):
        for e in range(4):
            p(f"v_cvt_pk_bf16_f32 v{220+4*ch+e}, v{202+2*(7-2*e)+ch}, v{202+2*(6-2*e)+ch}")
    sanitize(p, range(220, 228))
    p("ds_write_b128 v228, v[220:223]")
    p("ds_write_b128 v228, v[224:227] offset:128")
    if O("latef1", 1):
        p.vwait(id_xi)
        p("v_readfirstlane_b32 s3, v151")
        p("s_add_u32 s3, s3, 0x9e3779b9")
    p("s_waitcnt lgkmcnt(0)")
    p("s_barrier")
    p("ds_read_b128 v[220:223], v229")
    p("ds_read_b128 v[224:227], v229 offset:4096")
    if O("latef1", 1): publish(p, lambda: p("s_lshl_b32 s62, s2, 7"), 0)
    p(f"s_mov_b32 s82, {hex(WS_XR)}"); p(f"s_mov_b32 s83, {hex(WS_XR+131072)}")
    p("s_waitcnt lgkmcnt(1)")
    p.vm("buffer_store_dwordx4 v[220:223], v150, s[16:19], s82 offen sc1")
    p("s_waitcnt lgkmcnt(0)")
    p.vm("buffer_store_dwordx4 v[224:227], v150, s[16:19], s83 offen sc1")
    p.stamp(3)
    if O("fpos", 0) == 1: id_f = f_loads()
    if O("qpos", 0) == 3: id_q = q_loads(p)
    p("v_and_b32 v2, 63, v0")
    p("s_lshl_b32 s62, s86, 5")
    p("s_lshl_b32 s63, s52, 3")
    p("s_add_u32 s62, s62, s63")
    p("s_lshl_b32 s62, s62, 7")
    p("v_lshl_add_u32 v42, v2, 7, s62")
    p("v_cmp_gt_u32 vcc, 8, v2")
    p("v_cndmask_b32 v42, v249, v42, vcc")
    id_fa = p.vm("buffer_load_dword v43, v42, s[16:19], 0 offen sc1")
    if O("lateyt", 1): init_stores(p, [(230, WS_YT), (230, WS_YT + 4096)])
    pf.issue(O("nB", 0))
    p("v_lshrrev_b32 v2, 7, v0")
    p("v_and_b32 v3, 127, v0")
    p("v_bfe_u32 v93, v0, 5, 1")
    p(f"v_mul_u32_u24 v93, {XCH}, v93")
    p("v_bfe_u32 v94, v0, 4, 1")
    p(f"v_mul_u32_u24 v94, {XPL}, v94")
    p("v_add_u32 v93, v93, v94")
    p("v_and_b32 v94, 15, v0")
    p("v_lshl_add_u32 v93, v94, 4, v93")
    for j in range(4): p(f"v_mov_b32 v{96+j}, 0")
    p("ds_write_b128 v93, v[96:99]")
    p(f"v_mul_u32_u24 v95, {XCH}, v2")
    p("v_and_b32 v109, 1, v3")
    p(f"v_mul_u32_u24 v109, {XPL}, v109")
    p("v_add_u32 v109, v109, v95")
    p("v_lshrrev_b32 v94, 1, v3")
    p("v_lshl_add_u32 v109, v94, 4, v109")
    p(f"v_mul_u32_u24 v110, {4*CP}, v2")
    p("v_lshl_add_u32 v110, v3, 4, v110")
    p(f"v_add_u32 v110, {LK}, v110")
    p.vwait(id_f)
    for r, w in enumerate((64, 72, 80)):
        if r == 2:
            p("v_cmp_gt_u32 vcc, 2, v3")
            p("s_and_saveexec_b64 s[62:63], vcc")
            p("s_cbranch_execz SKIP3")
        for i in range(4): p(f"v_alignbit_b32 v{112+i}, v{w+i+1}, v{w+i}, 16")
        for i in range(4): p(f"v_mov_b32 v{116+i}, v{w+1+i}")
        for i in range(4): p(f"v_alignbit_b32 v{120+i}, v{w+i+2}, v{w+i+1}, 16")
        p(f"ds_write_b128 v110, v[112:115] offset:{0*CP + 2048*r}")
        p(f"ds_write_b128 v110, v[116:119] offset:{1*CP + 2048*r}")
        p(f"ds_write_b128 v110, v[120:123] offset:{2*CP + 2048*r}")
        p(f"ds_write_b128 v110, {vr(w+2,4)} offset:{3*CP + 2048*r}")
        if r == 2:
            p.label("SKIP3")
            p("s_mov_b64 exec, s[62:63]")
        p("s_nop 1")
    p("s_lshr_b32 s89, s52, 1")
    p("s_and_b32 s87, s52, 1")
    p("v_and_b32 v3, 15, v0")
    p("v_bfe_u32 v4, v0, 4, 2")
    p("v_and_b32 v5, 3, v3")
    p(f"v_mul_u32_u24 v5, {CP}, v5")
    p("v_lshrrev_b32 v6, 2, v3")
    p("v_lshl_add_u32 v5, v6, 3, v5")
    p("v_lshl_add_u32 v5, v4, 4, v5")
    p(f"s_mul_i32 s62, s89, {4*CP}")
    p(f"s_add_u32 s62, s62, {LK}")
    p("v_add_u32 v56, s62, v5")
    p("v_and_b32 v5, 1, v4")
    p("v_xor_b32 v5, 1, v5")
    p(f"v_mul_u32_u24 v5, {XPL}, v5")
    p("v_lshrrev_b32 v6, 1, v4")
    p("v_sub_u32 v6, v3, v6")
    p("v_add_u32 v6, 2, v6")
    p("v_lshl_add_u32 v5, v6, 4, v5")
    p(f"s_mul_i32 s81, s89, {XCH}")
    p("v_add_u32 v57, s81, v5")
    p("v_lshlrev_b32 v58, 7, v0")
    if O("qspos", 1) == 0:
        p.vwait(id_q)
        q_stats(p, 192, 208)
    poll_flags(p, "CA", 42, 43, 0, first_issued=id_fa)
    p("s_barrier")
    pf.issue(O("nB2", 0))
    p.stamp(4)
    def xloads():
        p(f"s_mov_b32 s82, {hex(WS_XR)}")
        p.vm("buffer_load_dwordx4 v[100:103], v108, s[16:19], s82 offen sc1")
        p.vm("buffer_load_dwordx4 v[104:107], v108, s[16:19], s82 offen offset:2048 sc1")
    poll_data(p, "PX", xloads, range(100, 108), 112, sleep0=O("sl_x0", 0), sleep=O("sl_x", 2))
    p.stamp(5)
    p("ds_write_b128 v109, v[100:103] offset:256")
    p("ds_write_b128 v109, v[104:107] offset:1280")
    if O("qpos", 0) == 0: id_q = q_loads(p)
    pf.collect()
    p("s_waitcnt lgkmcnt(0)")
    pf.release(emit=False)
    p("s_barrier")
    if O("lateyt", 1): publish(p, lambda: p("s_lshl_b32 s62, s2, 7"), 8)
    if O("bgap", 0):
        Lb = p.lab("BG")
        p("s_cmp_eq_u32 s95, 0")
        p(f"s_cbranch_scc1 {Lb}")
        p("s_sub_u32 s62, 27, s54")
        p("s_mul_i32 s62, s62, 9"); p("s_add_u32 s62, s62, 4")
        p("s_lshl_b32 s62, s62, 4")
        p("s_lshl_b32 s63, s52, 9")
        p("s_add_u32 s62, s62, s63")
        p("v_and_b32 v2, 15, v0")
        p("v_bfe_u32 v3, v0, 4, 2")
        p("v_add_u32 v4, s62, v2")
        p(f"v_mul_u32_u24 v4, {F*2}, v4")
        p("s_mul_i32 s62, s53, 24"); p("s_min_u32 s63, s53, 4"); p("s_add_u32 s62, s62, s63")
        p("s_mul_i32 s62, s62, 9363"); p("s_lshr_b32 s62, s62, 16")
        p("v_add_u32 v5, s62, v3")
        p("v_lshl_add_u32 v5, v5, 7, v4")
        p("buffer_load_dword v246, v5, s[20:23], 0 offen")
        p("s_add_u32 s62, s62, 4"); p("s_lshl_b32 s62, s62, 7")
        p("v_add_u32 v5, s62, v4")
        p("v_cmp_eq_u32 vcc, 0, v3")
        p("v_cndmask_b32 v5, v249, v5, vcc")
        p("buffer_load_dword v247, v5, s[20:23], 0 offen")
        p.label(Lb)
    p.stamp(6)
    tick_at = [O("b2start", 8) + O("b2step", 9) * i for i in range(O("nC", 14))]
    if O("nC0", 0):
        tick_at = [1 + 2 * i for i in range(O("nC0", 0))] + [O("c1start", 90) + O("c1step", 6) * i for i in range(O("nC", 14) - O("nC0", 0))]
    lagC = O("lagC", 99)
    ACCc = lambda i: 64 + 4 * i
    def RA(d):
        i = d % 8
        return 96 + 4 * i if i < 4 else 40 + 4 * (i - 4)
    def conv_path(h):
        cts = (0, 1, 6, 7) if h == 0 else (2, 3, 4, 5)
        top = 112 if h == 0 else 80
        nst = 8 * max(cts) + 8
        M = lambda ct, dd: (top - (16 * ct - 2 * dd)) // 2
        def breg(m):
            if h == 0: return 176 + 4 * (m - 48) if m >= 48 else 112 + 4 * (m % 16)
            return 112 + 4 * (m % 32)
        need = {}
        for dd in range(nst):
            for ct in cts:
                if dd <= 8 * ct + 7: need.setdefault(M(ct, dd), dd)
        groups = {dd: [m for m in need if need[m] == dd] for dd in range(nst)}
        last = {}
        def issue(dd):
            p(f"ds_read_b64 {vr(RA(dd),2)}, v56 offset:{64*dd}")
            p(f"ds_read_b64 {vr(RA(dd)+2,2)}, v56 offset:{64*dd+8}")
            for m in groups[dd]:
                n0 = top - 2 * m
                p(f"ds_read_b128 {vr(breg(m),4)}, v57 offset:{(n0+14)*16}")
            last[dd] = p.nlds - 1
        nxt = 0; started = set(); nm = 0
        state = {"idq": None, "idfb": None}
        issue(0); issue(1); nxt = 2
        for dd in range(nst):
            p.lwait(last[dd])
            while nxt < nst and nxt <= dd + 6 and (p.nlds - p.ldone) + 2 + len(groups[nxt]) <= 15:
                issue(nxt); nxt += 1
            if nxt <= dd + 1 and nxt < nst: issue(nxt); nxt += 1
            for i, ct in enumerate(cts):
                if dd > 8 * ct + 7: continue
                c = vr(ACCc(i), 4) if dd > 0 else "0"
                p(f"v_mfma_f32_16x16x32_bf16 {vr(ACCc(i),4)}, {vr(RA(dd),4)}, {vr(breg(M(ct,dd)),4)}, {c}")
                nm += 1
                if nm in tick_at: pf.tick(lagC)
                if nm == O("qat", 4) and O("qpos", 0) == 1: state["idq"] = q_loads(p)
                if nm == O("cbat", 120): state["idfb"] = p.vm(f"buffer_load_dword v59, v58, s[16:19], 0 offen offset:{8 if O('lateyt', 1) else 0} sc1")
        assert nm == 144
        p("v_and_b32 v3, 15, v0")
        p("v_bfe_u32 v4, v0, 4, 2")
        p("v_lshrrev_b32 v5, 1, v4")
        p(f"v_mul_u32_u24 v6, {XPL}, v5")
        p("v_lshl_add_u32 v6, v3, 4, v6")
        p("v_and_b32 v7, 1, v4")
        p("v_lshlrev_b32 v2, 3, v7")
        p("v_sub_u32 v6, v6, v2")
        p(f"s_mul_i32 s81, s89, {XCH}")
        p("s_add_u32 s81, s81, 264")
        p("v_add_u32 v6, s81, v6")
        for i, ct in enumerate(cts): p(f"ds_read_b64 {vr(96+2*i,2)}, v6 offset:{256*ct}")
        p.stamp(7)
        p("v_bfe_u32 v6, v3, 2, 1")
        p("v_xor_b32 v5, v5, v6")
        p("v_lshlrev_b32 v5, 4, v5")
        p("v_lshl_add_u32 v5, v3, 5, v5")
        p("v_add_u32 v5, v5, v2")
        p("s_lshl_b32 s63, s89, 12")
        p(f"s_add_u32 s63, s63, {TB}")
        p("v_add_u32 v42, s63, v5")
        p("s_lshl_b32 s62, s88, 16")
        p("s_and_b32 s63, s88, 0xffff0000")
        p("s_cmp_eq_u32 s89, 0")
        p("s_cselect_b32 s62, s62, s63")
        p("s_waitcnt lgkmcnt(0)")
        for i in range(4):
            d0, d1 = 96 + 2 * i, 97 + 2 * i
            b = 112 + 4 * i
            p(f"v_lshlrev_b32 v{b+3}, 16, v{d0}")
            p(f"v_and_b32 v{b+2}, 0xffff0000, v{d0}")
            p(f"v_lshlrev_b32 v{b+1}, 16, v{d1}")
            p(f"v_and_b32 v{b+0}, 0xffff0000, v{d1}")
        for j in range(16): p(f"v_fmac_f32 v{64+j}, s62, v{112+j}")
        for i in range(4):
            p(f"v_cvt_pk_bf16_f32 v{96+2*i}, v{64+4*i}, v{65+4*i}")
            p(f"v_cvt_pk_bf16_f32 v{97+2*i}, v{66+4*i}, v{67+4*i}")
        sanitize(p, range(96, 104))
        for i, ct in enumerate(cts): p(f"ds_write_b64 v42, {vr(96+2*i,2)} offset:{512*ct}")
        p("s_waitcnt lgkmcnt(0)")
        pf.reap()
        return state
    import copy
    snap = (p.nvm, p.done, p.nlds, p.ldone, copy.deepcopy((pf.queue, pf.free, pf.freeing, pf.inflight)))
    p("s_cmp_eq_u32 s87, 0")
    p("s_cbranch_scc0 CV_H1")
    st0 = conv_path(0)
    end0 = (p.nvm, p.done, copy.deepcopy((pf.queue, sorted(pf.free), pf.freeing, pf.inflight)))
    p("s_branch CV_JOIN")
    p.label("CV_H1")
    p.nvm, p.done, p.nlds, p.ldone = snap[:4]
    pf.queue, pf.free, pf.freeing, pf.inflight = copy.deepcopy(snap[4])
    st1 = conv_path(1)
    end1 = (p.nvm, p.done, copy.deepcopy((pf.queue, sorted(pf.free), pf.freeing, pf.inflight)))
    assert end0[0] == end1[0] and end0[2] == end1[2] and st0 == st1, (end0, end1)
    p.done = min(end0[1], end1[1])
    p.label("CV_JOIN")
    if O("qpos", 0) == 1: id_q = st0["idq"]
    id_fb = st0["idfb"]
    p("v_and_b32 v5, 63, v0")
    p("v_bfe_u32 v6, v5, 1, 1")
    p("v_bfe_u32 v7, v5, 4, 1")
    p("v_xor_b32 v6, v6, v7")
    p("v_lshlrev_b32 v6, 4, v6")
    p("v_lshrrev_b32 v7, 2, v5")
    p("v_lshl_add_u32 v6, v7, 5, v6")
    p("v_and_b32 v7, 1, v5")
    p("v_lshl_add_u32 v6, v7, 12, v6")
    p("s_lshl_b32 s63, s52, 10")
    p(f"s_add_u32 s63, s63, {TB}")
    p("v_add_u32 v46, s63, v6")
    p("s_lshl_b32 s63, s2, 13")
    p("s_lshl_b32 s81, s52, 11")
    p("s_add_u32 s63, s63, s81")
    p("v_lshl_add_u32 v47, v5, 4, s63")
    p("s_barrier")
    p("ds_read_b128 v[96:99], v46")
    p("ds_read_b128 v[100:103], v46 offset:512")
    p(f"s_mov_b32 s82, {hex(WS_YT)}")
    p("s_waitcnt lgkmcnt(1)")
    p.vm("buffer_store_dwordx4 v[96:99], v47, s[16:19], s82 offen sc1")
    p("s_waitcnt lgkmcnt(0)")
    p.vm("buffer_store_dwordx4 v[100:103], v47, s[16:19], s82 offen offset:1024 sc1")
    p.stamp(8)
    if O("qspos", 1) == 1:
        p.vwait(id_q)
        q_stats(p, 192, 208)
        pf.free.append(13)
    else:
        q_expand(p)
    nD2 = O("nD2", 0)
    if O("flowD", 0): pf.flow(O("nD", 14) - nD2, O("flowD", 0))
    else:
        pf.collect(); pf.release()
        pf.issue(O("nD", 14))
    poll_flags(p, "CB", 58, 59, 8 if O("lateyt", 1) else 0, first_issued=id_fb)
    yfirst = None
    if nD2:
        yfirst = y_loads(p)
        pf.flow(nD2, O("flowD", 4))
    p.stamp(9)
    p3(p, pf, yfirst)
    if O("qspos", 1) == 0: pf.free.append(13)
    epoch_update(p)
    srd(p, 28, 40, F * 2); srd(p, 32, 44, S * 2)
    p("s_lshl_b32 s62, s57, 7")
    p("s_and_b32 s63, s52, 1")
    p("s_lshl_b32 s63, s63, 6")
    p("s_add_u32 s62, s62, s63")
    p("s_or_b32 s62, s62, s95")
    p("v_bfe_u32 v2, v0, 5, 1")
    p("v_lshl_add_u32 v2, v2, 3, s62")
    for r4 in range(4): p.vm(f"buffer_load_dwordx2 {vr(16+2*r4,2)}, v2, s[28:31], 0 offen offset:{16*r4}")
    p("v_and_b32 v2, 63, v0")
    p("s_lshl_b32 s62, s52, 6")
    p("v_add_u32 v2, s62, v2")
    p("v_and_b32 v3, 31, v2")
    p("v_lshlrev_b32 v3, 3, v3")
    p("v_lshrrev_b32 v2, 5, v2")
    p("v_or_b32 v2, v2, v3")
    p("v_lshlrev_b32 v2, 7, v2")
    p("v_or_b32 v42, s95, v2")
    p(f"s_lshl_b32 s{S_ST}, s90, 11")
    p(f"s_add_u32 s{S_ST}, s{S_ST}, {hex(WS_HN)}")
    nE2 = O("nE2", 0)
    if O("flowE", 0): pf.flow(O("nE", 12) - nE2, O("flowE", 0))
    else:
        pf.collect(); pf.release()
        pf.issue(O("nE", 12))
    g4first = None
    if nE2:
        g4first = p.vm("buffer_load_dword v43, v42, s[16:19], 0 offen offset:4 sc1")
        pf.flow(nE2, O("flowE", 4))
    while pf.w1_left():
        pf.issue(14, only="w1"); pf.collect(); pf.release()
    poll_flags(p, "G4", 42, 43, 4, sleep0=O("sl_g40", 0), sleep=O("sl_g4", 2), first_issued=g4first)
    p.stamp(12)
    PD = O("pd", 7)
    def hook4(where, ks):
        if where == "pre":
            for r4 in range(4):
                unpack(p, 64 + 4 * r4, 65 + 4 * r4, 16 + 2 * r4)
                unpack(p, 66 + 4 * r4, 67 + 4 * r4, 17 + 2 * r4)
        if where == "end":
            pf.areg_free = ks + 1
            if ks + PD < 32 - 2: pf.collect(maxn=1)
        if where == "top" and ks + PD >= 32:
            pf.release()
            pf.issue(O("nTail", 2))
    gemm_loop(p, 32, V_O4A, V_O4B, WS_HN, True, hook4, init0=True)
    pf.release(); pf.issue(O("nPost", 14))
    p.stamp(13)
    gemm_reduce(p, (lambda: pf.issue(O("nMid", 0), force=False)) if O("nMid", 0) else None)
    p("s_mov_b32 s62, 0xbdd2d3e8"); p("s_mov_b32 s63, 0xbdd2d3e8")
    p("v_mov_b32 v40, 0xc0135761"); p("v_mov_b32 v41, 0xc0135761")
    p("v_mov_b32 v42, 1.0"); p("v_mov_b32 v43, 1.0")
    for e in range(0, 16, 2): p(f"v_pk_mul_f32 {vr(96+e,2)}, {vr(64+e,2)}, {vr(64+e,2)}")
    for e in range(0, 16, 2): p(f"v_pk_fma_f32 {vr(96+e,2)}, {vr(96+e,2)}, s[62:63], v[40:41]")
    for e in range(0, 16, 2): p(f"v_pk_mul_f32 {vr(96+e,2)}, {vr(96+e,2)}, {vr(64+e,2)}")
    for e in range(16): p(f"v_exp_f32 v{96+e}, v{96+e}")
    for e in range(0, 16, 2): p(f"v_pk_add_f32 {vr(96+e,2)}, {vr(96+e,2)}, v[42:43]")
    for e in range(16): p(f"v_rcp_f32 v{96+e}, v{96+e}")
    for e in range(0, 16, 2): p(f"v_pk_mul_f32 {vr(64+e,2)}, {vr(64+e,2)}, {vr(96+e,2)}")
    for r4 in range(4):
        p(f"v_cvt_pk_bf16_f32 v{96+2*r4}, v{64+4*r4}, v{65+4*r4}")
        p(f"v_cvt_pk_bf16_f32 v{97+2*r4}, v{66+4*r4}, v{67+4*r4}")
    for u in range(2):
        p(f"v_permlane32_swap_b32 v{96+4*u}, v{98+4*u}")
        p(f"v_permlane32_swap_b32 v{97+4*u}, v{99+4*u}")
    p(f"s_mov_b32 s82, {hex(WS_U)}")
    p.vm(f"buffer_store_dwordx4 v[96:99], v{V_UST}, s[16:19], s82 offen sc1")
    p.vm(f"buffer_store_dwordx4 v[100:103], v{V_UST}, s[16:19], s82 offen offset:2048 sc1")
    p.stamp(14)
    p.vwait_all()
    p("s_barrier")
    def f4off():
        p("s_lshl_b32 s62, s56, 7"); p(f"s_add_u32 s62, s62, {hex(WS_FLAG4)}")
    publish(p, f4off, 0, only_p4=True)
    p.stamp(19)
    p("v_and_b32 v2, 31, v0")
    p("s_lshl_b32 s62, s59, 6")
    p("s_and_b32 s63, s52, 1")
    p("s_lshl_b32 s63, s63, 5")
    p("s_add_u32 s62, s62, s63")
    p("v_add_u32 v2, s62, v2")
    p("v_lshlrev_b32 v3, 1, v2")
    p("v_mul_u32_u24 v2, 896, v2")
    p("s_lshl_b32 s62, s60, 7")
    p("s_lshr_b32 s63, s52, 1")
    p("s_lshl_b32 s63, s63, 6")
    p("s_add_u32 s62, s62, s63")
    p("v_add_u32 v2, s62, v2")
    p("v_bfe_u32 v4, v0, 5, 1")
    p("v_lshl_add_u32 v44, v4, 4, v2")
    p.vm("buffer_load_ushort v45, v3, s[32:35], 0 offen")
    srd(p, 96, 46, SZ_SD)
    p("v_and_b32 v2, 63, v0")
    p("s_mul_i32 s62, s52, 7")
    p("v_add_u32 v3, s62, v2")
    p("v_mul_u32_u24 v3, 7, v3")
    p("v_add_u32 v3, s60, v3")
    p("v_lshlrev_b32 v3, 7, v3")
    p(f"v_add_u32 v3, {hex(WS_FLAG4)}, v3")
    p("v_cmp_gt_u32 vcc, 7, v2")
    p("v_cndmask_b32 v42, v249, v3, vcc")
    p(f"s_lshl_b32 s{S_ST}, s91, 11")
    p(f"s_add_u32 s{S_ST}, s{S_ST}, {hex(WS_U)}")
    nF2 = O("nF2", 0)
    pf.flow(len(pf.queue) - min(nF2, len(pf.queue)), O("flowF", 4))
    g5first = None
    if nF2:
        g5first = p.vm("buffer_load_dword v46, v42, s[16:19], 0 offen sc1")
        pf.flow(99, O("flowF", 4))
    poll_flags(p, "G5", 42, 46, 0, sleep0=O("sl_g50", 0), sleep=O("sl_g5", 2), first_issued=g5first)
    p.stamp(15)
    st5 = {}
    def hook5(where, ks):
        if where == "pre":
            p(f"s_mov_b32 s81, {hex(WS_H)}")
            p.vm("buffer_load_dwordx4 v[48:51], v44, s[16:19], s81 offen sc1")
            st5["h"] = p.vm("buffer_load_dwordx4 v[52:55], v44, s[16:19], s81 offen offset:32 sc1")
            pf.collect(); pf.release()
            assert not pf.queue and not pf.inflight, (pf.queue, pf.inflight)
        if where == "end" and ks == 9:
            p.vwait(st5["h"])
            for a, b in ((48, 50), (49, 51), (52, 54), (53, 55)): p(f"v_permlane32_swap_b32 v{a}, v{b}")
            p("v_lshlrev_b32 v46, 16, v45")
            p("v_lshlrev_b32 v47, 16, v45")
            for i in range(8): unpack(p, 192 + 2 * i, 193 + 2 * i, 48 + i)
            for e in range(0, 16, 2): p(f"v_pk_add_f32 {vr(192+e,2)}, {vr(192+e,2)}, v[46:47]")
            pk_add(p, 64, 64, 192)
    gemm_loop(p, 28, V_O5A, V_O5B, WS_U, False, hook5, wrap=O("rot", 2) != 3)
    p.stamp(16)
    gemm_reduce(p)
    for r4 in range(4):
        p(f"v_cvt_pk_bf16_f32 v{96+2*r4}, v{64+4*r4}, v{65+4*r4}")
        p(f"v_cvt_pk_bf16_f32 v{97+2*r4}, v{66+4*r4}, v{67+4*r4}")
    for u in range(2):
        p(f"v_permlane32_swap_b32 v{96+4*u}, v{98+4*u}")
        p(f"v_permlane32_swap_b32 v{97+4*u}, v{99+4*u}")
    op = ["", " sc1", " nt", " sc0 sc1"][O("outpol", 0)]
    p.vm("buffer_store_dwordx4 v[96:99], v44, s[96:99], 0 offen" + op)
    p.vm("buffer_store_dwordx4 v[100:103], v44, s[96:99], 0 offen offset:32" + op)
    p("s_branch FIN")
    p.label("CPATH")
    p.nvm, p.done = nvm0, done0
    if O("lateids", 1): tile_ids(p)
    p3_addresses(p)
    id_q = q_loads(p)
    p.vwait(id_q)
    p("v_readfirstlane_b32 s3, v151")
    p("s_add_u32 s3, s3, 0x9e3779b9")
    p("s_barrier")
    publish(p, lambda: p("s_lshl_b32 s62, s2, 7"), 8 if O("lateyt", 1) else 0)
    q_stats(p, 192, 208)
    if O("qspos", 1) == 0: q_expand(p)
    def help_w2(r0, r1):
        for r in range(r0, r1):
            p(f"s_mov_b32 s82, {r*64*4096}")
            p.vm("buffer_load_dword v246, v61, s[24:27], s82 offen")
            p.vwait_all()
    if O("w1touch", 0):
        w1_touch(p); p.vwait_all()
    if O("help", 0):
        srd(p, 20, 38, S * F * 2); srd(p, 24, 42, F * S * 2)
        p("s_sub_u32 s86, s54, 28")
        p("v_and_b32 v2, 15, v0")
        p("v_bfe_u32 v3, v0, 4, 2")
        if O("helpw1", 1):
            p("s_mul_i32 s62, s86, 9"); p("s_add_u32 s62, s62, 4")
            p("s_lshl_b32 s62, s62, 4")
            p("s_lshl_b32 s63, s52, 9")
            p("s_add_u32 s62, s62, s63")
            p("v_add_u32 v4, s62, v2")
            p(f"v_mul_u32_u24 v4, {F*2}, v4")
            fbbase(p, 62)
            p("v_add_u32 v5, s62, v3")
            p("v_lshl_add_u32 v5, v5, 7, v4")
            p.vm("buffer_load_dword v246, v5, s[20:23], 0 offen")
            p.vwait_all()
        p("s_mul_i32 s62, s52, 448"); p("s_lshl_b32 s63, s86, 4"); p("s_add_u32 s62, s62, s63")
        p("v_add_u32 v4, s62, v2")
        p("v_lshlrev_b32 v4, 12, v4")
        p("s_lshl_b32 s62, s53, 2")
        p("v_add_u32 v5, s62, v3")
        p("v_lshl_add_u32 v61, v5, 7, v4")
        help_w2(0, O("nH1", 3))
    p("v_lshlrev_b32 v58, 7, v0")
    if O("csleep", 0): p(f"s_sleep {O('csleep', 0)}")
    poll_flags(p, "CB", 58, 59, 8 if O("lateyt", 1) else 0, sleep=16)
    p3(p)
    if O("help", 0): help_w2(O("nH1", 3), 7)
    p.label("FIN")
    if DIAG:
        p.vwait_all()
        p.stamp(17)
        p("v_and_b32 v1, 63, v0")
        p("s_lshl_b32 s62, s2, 2")
        p("s_add_u32 s62, s62, s52")
        p("s_lshl_b32 s62, s62, 7")
        p(f"s_add_u32 s62, s62, {hex(WS_STAMP)}")
        p("v_lshlrev_b32 v1, 2, v1")
        p("s_mov_b32 exec_lo, -1"); p("s_mov_b32 exec_hi, 0")
        p("buffer_store_dword v250, v1, s[16:19], s62 offen")
    p.label("END")
    p("s_endpgm")
    p.label("L_CODE_END")
    p("s_endpgm")

HEADER = open(__file__.replace("gen_v6.py", "header.txt")).read()
def main(path):
    name = NAME + "_kernel"
    p = K(); main_kernel(p)
    out = [HEADER, f"; @launch grid=(256,1,1) block=(256,1,1) lds={LDS_BYTES}\n",
           '.amdgcn_target "amdgcn-amd-amdhsa--gfx950"\n.text\n',
           f".globl {name}\n.p2align 8\n.type {name},@function\n{name}:\n",
           render(pad_hazards(p.lines)),
           f""".section .rodata,"a"
.p2align 6
.amdhsa_kernel {name}
  .amdhsa_next_free_vgpr 512
  .amdhsa_next_free_sgpr 102
  .amdhsa_accum_offset 256
  .amdhsa_group_segment_fixed_size 0
  .amdhsa_kernarg_size 112
  .amdhsa_user_sgpr_count 2
  .amdhsa_user_sgpr_kernarg_segment_ptr 1
  .amdhsa_system_sgpr_workgroup_id_x 1
  .amdhsa_float_denorm_mode_32 3
.end_amdhsa_kernel
"""]
    open(path, "w").write("".join(out))

if __name__ == "__main__":
    DIAG = "--diag" in sys.argv
    for a in sys.argv[2:]:
        if "=" in a:
            k, v = a.split("="); OPT[k] = int(v)
    main(sys.argv[1])
```
